```python
import torch

def _softmax(x, axis=-1):
    return torch.softmax(x, dim=axis)
def _gelu(x):
    return torch.nn.functional.gelu(x, approximate="tanh")
def _silu(x):
    return torch.nn.functional.silu(x)
def _sigmoid(x):
    return torch.sigmoid(x)
def _layernorm(x, axis=-1, eps=1e-5):
    m = x.mean(dim=axis, keepdim=True)
    v = x.var(dim=axis, keepdim=True, unbiased=False)
    return (x - m) / torch.sqrt(v + eps)
def _scatter_add(tgt, idx, src, axis=0):
    return tgt.clone().index_add_(axis, idx, src)
def _segment_sum(src, seg, n):
    out = torch.zeros((n,) + src.shape[1:], dtype=src.dtype)
    return out.index_add_(0, seg, src)
def _pad(x, pw):
    flat = tuple(v for pair in reversed(pw) for v in pair)
    return torch.nn.functional.pad(x, flat)

kernel_name = 'recurrent_scan__compressed_kv_cla__dense_activation_squared_relu__decode'

def setup_inputs():

    _w = (lambda a: (lambda t: t.to(torch.bfloat16) if t.is_floating_point() else t)(torch.as_tensor(a)))
    def _A_setup():
        B, H, Sq, Sk, D, M = 1, 16, 1, 8192, 256, 448
        Dc = 4 * D
        return {
            "x": _w((lambda *s: torch.randn(*s, dtype=torch.bfloat16) * 0.05)(B, Sq, M)),
            "c_kv": _w((lambda *s: torch.randn(*s, dtype=torch.bfloat16) * 0.8)(B, Sk, Dc)),
            "w_q": _w((lambda *s: torch.randn(*s, dtype=torch.bfloat16) * 1.6)(M, H, D) * (M ** -0.5)),
            "w_uk": _w((lambda *s: torch.randn(*s, dtype=torch.bfloat16) * 1.6)(Dc, H, D) * (Dc ** -0.5)),
            "w_uv": _w((lambda *s: torch.randn(*s, dtype=torch.bfloat16) * 0.8)(Dc, H, D) * (Dc ** -0.5)),
            "w_o": _w((lambda *s: torch.randn(*s, dtype=torch.bfloat16) * 0.8)(H, D, M) * ((H * D) ** -0.5)),
        }
    _A_in = _A_setup()

    def _B_setup():
        B, S, D, F = 1, 1, 448, 1792
        return {
            "x": _w((lambda *s: torch.randn(*s, dtype=torch.bfloat16) * 0.05)(B, S, D)),
            "w1": _w((lambda *s: torch.randn(*s, dtype=torch.bfloat16) * 0.2)(D, F)),
            "b1": _w((lambda *s: torch.randn(*s, dtype=torch.bfloat16) * 0.2)(F)),
            "w2": _w((lambda *s: torch.randn(*s, dtype=torch.bfloat16) * 0.2)(F, D)),
            "b2": _w((lambda *s: torch.randn(*s, dtype=torch.bfloat16) * 0.2)(D)),
        }
    _B_in = _B_setup()

    return {
        "A_x": _A_in["x"],
        "A_c_kv": _A_in["c_kv"],
        "A_w_q": _A_in["w_q"],
        "A_w_uk": _A_in["w_uk"],
        "A_w_uv": _A_in["w_uv"],
        "A_w_o": _A_in["w_o"],
        "B_x": _B_in["x"],
        "B_w1": _B_in["w1"],
        "B_b1": _B_in["b1"],
        "B_w2": _B_in["w2"],
        "B_b2": _B_in["b2"],
    }

def reference(A_x, A_c_kv, A_w_q, A_w_uk, A_w_uv, A_w_o, B_x, B_w1, B_b1, B_w2, B_b2):
    def _A_ref(x, c_kv, w_q, w_uk, w_uv, w_o):
        B, Sq, M = x.shape[0], x.shape[1], x.shape[2]
        Sk = c_kv.shape[1]
        H, D = w_q.shape[1], w_q.shape[2]
        q = torch.einsum("bqm,mhd->bhqd", x, w_q)
        k = torch.einsum("bkc,chd->bhkd", c_kv, w_uk)
        v = torch.einsum("bkc,chd->bhkd", c_kv, w_uv)
        scores = torch.einsum("bhqd,bhkd->bhqk", q, k) * (D ** -0.5)
        off = Sk - Sq
        qi = torch.arange(Sq)[:, None]
        kj = torch.arange(Sk)[None, :]
        cmask = kj <= (qi + off)
        scores = torch.where(cmask[None, None], scores, -1e9)
        p = _softmax(scores, axis=-1)
        ctx = torch.einsum("bhqk,bhkd->bhqd", p, v)
        return torch.einsum("bhqd,hdm->bqm", ctx, w_o)

    def _B_ref(x, w1, b1, w2, b2):
        h = torch.einsum("bsd,df->bsf", x, w1) + b1
        zero = torch.zeros_like(h)
        r = torch.where(h > zero, h, zero)
        h = r * r
        out = torch.einsum("bsf,fd->bsd", h, w2) + b2
        return out

    x = A_x
    xn = _layernorm(x, axis=-1)
    s = _A_ref(xn, A_c_kv, A_w_q, A_w_uk, A_w_uv, A_w_o)
    g = _silu(_B_ref(xn, B_w1, B_b1, B_w2, B_b2))
    return x + s * g
```

```python
NAME = "recurrent_scan__compressed_kv_cla__dense_activation_squared_relu__decode"
REF = "cdna_kernels/%s.s.ref" % NAME

class Asm:
    def __init__(self):
        self.lines = []
        self.nlabel = 0
    def __call__(self, s):
        for l in s.split("\n"):
            l = l.strip()
            if l:
                self.lines.append("    " + l if not l.endswith(":") else l)
    def label(self, base="L"):
        self.nlabel += 1
        return "%s_%d" % (base, self.nlabel)
    def comment(self, s):
        self.lines.append("    ; " + s)

def header_comments():
    hdr = open(REF).read().split("\n")
    return [l for l in hdr if l.startswith(";") and "@launch" not in l]

def build_file(path, launches, kernels):
    out = header_comments()
    for l in launches:
        out.append("; @launch " + l)
    out += ['.amdgcn_target "amdgcn-amd-amdhsa--gfx950"', ".text"]
    for (label, a, vg, sg, acc) in kernels:
        out += [".globl %s" % label, ".p2align 8", ".type %s,@function" % label, "%s:" % label]
        out += a.lines
    out += ['.section .rodata,"a"']
    for (label, a, vg, sg, acc) in kernels:
        out += [".p2align 6", ".amdhsa_kernel %s" % label,
                "  .amdhsa_next_free_vgpr %d" % vg, "  .amdhsa_next_free_sgpr %d" % sg,
                "  .amdhsa_accum_offset %d" % acc, "  .amdhsa_group_segment_fixed_size 0",
                "  .amdhsa_kernarg_size 112", "  .amdhsa_user_sgpr_count 2",
                "  .amdhsa_user_sgpr_kernarg_segment_ptr 1", "  .amdhsa_system_sgpr_workgroup_id_x 1",
                "  .amdhsa_float_denorm_mode_32 3",
                ".end_amdhsa_kernel"]
    open(path, "w").write("\n".join(out) + "\n")
```

```python
import sys
from gen import *

WS_EPOCH = 0
WS_E1 = 0x10000
WS_E2 = 0x50000
WS_SENT = 0x100000
WS_E4 = WS_SENT + 0x00000
WS_P = WS_SENT + 0x80000
WS_M = WS_SENT + 0xC0000
WS_L = WS_SENT + 0xC4000
WS_O = 0x200000
WS_S6 = 0x280000
WS_STAMP = 0x400000

L_QAP = 0x0
L_H = 0x400
L_X5 = 0x500
L_WG = 0x700
L_R4 = 0x800
L_SP = 0x9000
L_QA = 0xD800
LDS_BYTES = 0x15800

P_X, P_C, P_WQ, P_WUK, P_WUV, P_WO, P_BX, P_W1, P_B1, P_W2, P_B2, P_OUT, P_DBG, P_WS = \
    ["s[%d:%d]" % (8 + 2 * i, 9 + 2 * i) for i in range(14)]

S_SELLO, S_SELHI, S_FF, S_HIMASK = "s36", "s37", "s38", "s39"
S_MEAN, S_DEN, S_RDEN = "s40", "s41", "s42"
S_T = "s43"
S_CNT = "s44"
S_A, S_B, S_C2, S_D = "s45", "s46", "s47", "s48"
S_CMP = "s[50:51]"
S_EX = "s[52:53]"
S_W = "s54"
S_RP = "s55"
S_DB, S_CB = "s56", "s57"
STAMP0 = 60

LIMIT = 20000


def q(r, n=4):
    return "v[%d:%d]" % (r, r + n - 1)


class K:
    def __init__(self, nt="nt", stamps=False, opts=None):
        self.a = Asm()
        self.nt = nt
        self.stamps = stamps
        self.nstamp = 0
        self.o = opts or {}

    def nop(self, n):
        self.a("s_nop %d" % n)

    def stamp(self, k):
        if self.stamps:
            self.a("s_memrealtime s[%d:%d]" % (STAMP0 + 2 * k, STAMP0 + 2 * k + 1))

    def dump_stamps(self, n):
        if not self.stamps:
            return
        a = self.a
        a("s_waitcnt lgkmcnt(0)")
        a("s_lshl_b32 %s, s2, 4" % S_A)
        a("s_add_u32 %s, %s, s3" % (S_A, S_A))
        a("s_lshl_b32 %s, %s, 7" % (S_A, S_A))
        a("s_add_u32 %s, %s, 0x%x" % (S_A, S_A, WS_STAMP))
        a("s_mov_b64 exec, -1")
        a("v_mov_b32 v5, %s" % S_A)
        for k in range(n):
            a("v_mov_b32 v%d, s%d" % (8 + k, STAMP0 + 2 * k))
        a("s_mov_b64 exec, 1")
        for k in range(n):
            a("global_store_dword v5, v%d, %s offset:%d" % (8 + k, P_WS, 4 * k))
        a("s_mov_b64 exec, -1")

    def wave_sum_to_sgpr(self, v, s):
        a = self.a
        for sh in (1, 2, 4, 8):
            self.nop(1)
            a("v_add_f32_dpp v%d, v%d, v%d row_shr:%d row_mask:0xf bank_mask:0xf bound_ctrl:0" % (v, v, v, sh))
        self.nop(1)
        a("v_add_f32_dpp v%d, v%d, v%d row_bcast:15 row_mask:0xa bank_mask:0xf" % (v, v, v))
        self.nop(1)
        a("v_add_f32_dpp v%d, v%d, v%d row_bcast:31 row_mask:0xc bank_mask:0xf" % (v, v, v))
        self.nop(0)
        a("v_readlane_b32 %s, v%d, 63" % (s, v))
        self.nop(1)

    def rb(self, v, t):
        a = self.a
        a("v_cvt_pk_bf16_f32 v%d, v%d, v%d" % (t, v, v))
        a("v_lshlrev_b32 v%d, 16, v%d" % (v, t))

    def rb2(self, v0, v1, t):
        a = self.a
        a("v_cvt_pk_bf16_f32 v%d, v%d, v%d" % (t, v0, v1))
        a("v_lshlrev_b32 v%d, 16, v%d" % (v0, t))
        a("v_and_b32 v%d, 0xffff0000, v%d" % (v1, t))

    def unpack(self, src, lo, hi):
        a = self.a
        a("v_lshlrev_b32 v%d, 16, v%d" % (lo, src))
        a("v_and_b32 v%d, 0xffff0000, v%d" % (hi, src))

    def xnorm(self, regs, t0, t1):
        a = self.a
        for r in regs:
            a("v_subrev_f32 v%d, %s, v%d" % (r, S_MEAN, r))
        i = 0
        while i < len(regs):
            if i + 1 < len(regs):
                self.rb2(regs[i], regs[i + 1], t0)
                i += 2
            else:
                self.rb(regs[i], t0)
                i += 1
        for r in regs:
            a("v_mul_f32 v%d, %s, v%d" % (t0, S_RDEN, r))
            a("v_fma_f32 v%d, -v%d, %s, v%d" % (t1, t0, S_DEN, r))
            a("v_fma_f32 v%d, v%d, %s, v%d" % (r, t1, S_RDEN, t0))

    def row_allreduce(self, op, regs, steps=(8, 4, 2, 1)):
        a = self.a
        for sh in steps:
            if len(regs) < 3:
                self.nop(1)
            for v in regs:
                a("%s_dpp v%d, v%d, v%d row_ror:%d row_mask:0xf bank_mask:0xf" % (op, v, v, v, sh))

    def quad_allreduce(self, op, regs):
        a = self.a
        for pm in ("[1,0,3,2]", "[2,3,0,1]"):
            if len(regs) < 3:
                self.nop(1)
            for v in regs:
                a("%s_dpp v%d, v%d, v%d quad_perm:%s row_mask:0xf bank_mask:0xf" % (op, v, v, v, pm))

    def xswap_allreduce(self, op, v, t, which):
        a = self.a
        a("v_mov_b32 v%d, v%d" % (t, v))
        self.nop(1)
        a("v_permlane%d_swap_b32 v%d, v%d" % (which, v, t))
        self.nop(1)
        a("%s v%d, v%d, v%d" % (op, v, v, t))

    def swap_reduce4(self, s0, s1, s2, s3):
        a = self.a
        self.nop(1)
        a("v_permlane32_swap_b32 v%d, v%d" % (s0, s2))
        a("v_permlane32_swap_b32 v%d, v%d" % (s1, s3))
        self.nop(1)
        a("v_add_f32 v%d, v%d, v%d" % (s0, s0, s2))
        a("v_add_f32 v%d, v%d, v%d" % (s1, s1, s3))
        self.nop(1)
        a("v_permlane16_swap_b32 v%d, v%d" % (s0, s1))
        self.nop(1)
        a("v_add_f32 v%d, v%d, v%d" % (s0, s0, s1))

    def perm_frags(self, rows, frag):
        a = self.a
        for e in range(4):
            for qq in range(4):
                lo = rows + 2 * (2 * qq) + (e >> 1)
                hi = rows + 2 * (2 * qq + 1) + (e >> 1)
                a("v_perm_b32 v%d, v%d, v%d, %s" % (frag + 4 * e + qq, hi, lo, S_SELHI if (e & 1) else S_SELLO))

    def swap8(self, X, Y, tmp):
        a = self.a
        for i in range(4):
            a("v_mov_b32 v%d, v%d" % (tmp + i, Y + i))
        for i in range(4):
            a("v_mov_b32_dpp v%d, v%d row_ror:8 row_mask:0xf bank_mask:0x3" % (Y + i, X + i))
        for i in range(4):
            a("v_mov_b32_dpp v%d, v%d row_ror:8 row_mask:0xf bank_mask:0xc" % (X + i, tmp + i))

    def tag_quad(self, dst, srcs, tb):
        a = self.a
        for i in range(4):
            a("v_bfi_b32 v%d, %s, v%d, v%d" % (dst + i, S_FF, tb + i, srcs[i]))

    def make_tags(self, vep, tb):
        a = self.a
        a("v_add_u32 v%d, 0x01010101, v%d" % (vep, vep))
        a("v_and_b32 v%d, 0xff, v%d" % (tb, vep))
        a("v_bfe_u32 v%d, v%d, 8, 8" % (tb + 1, vep))
        a("v_bfe_u32 v%d, v%d, 16, 8" % (tb + 2, vep))
        a("v_lshrrev_b32 v%d, 24, v%d" % (tb + 3, vep))
        a("v_readfirstlane_b32 %s, v%d" % (S_T, vep))

    def poll(self, code, loads, check, acc, mode, pre_exec=None, sleep=0):
        a = self.a
        lp = a.label("Lpoll")
        ld = a.label("Lpdone")
        a("s_mov_b32 %s, 0" % S_CNT)
        a("%s:" % lp)
        loads()
        a("s_waitcnt vmcnt(0)")
        check()
        if mode == "tag":
            a("v_and_b32 v%d, 0xff, v%d" % (acc, acc))
            a("v_cmp_ne_u32 %s, 0, v%d" % (S_CMP, acc))
        else:
            a("v_cmp_eq_u32 %s, -1, v%d" % (S_CMP, acc))
        a("s_mov_b64 exec, -1")
        a("s_cmp_eq_u64 %s, 0" % S_CMP)
        a("s_cbranch_scc1 %s" % ld)
        sleep = self.o.get("sleep", sleep)
        if sleep:
            a("s_sleep %d" % sleep)
        a("s_add_u32 %s, %s, 1" % (S_CNT, S_CNT))
        a("s_cmp_lt_u32 %s, %d" % (S_CNT, LIMIT))
        a("s_cbranch_scc1 %s" % lp)
        a("v_mov_b32 v%d, %d" % (acc, 4 * code))
        a("v_mov_b32 v2, s2")
        a("v_add_u32 v2, 0x10000, v2")
        a("global_store_dword v%d, v2, %s" % (acc, P_DBG))
        a("%s:" % ld)

    def check_tags(self, quads, acc, tb):
        a = self.a
        first = True
        for qd in quads:
            for i in range(4):
                if first:
                    a("v_xor_b32 v%d, v%d, v%d" % (acc, qd + i, tb + i))
                    first = False
                else:
                    a("v_bitop3_b32 v%d, v%d, v%d, v%d bitop3:0xf6" % (acc, acc, qd + i, tb + i))

    def check_sent(self, regs, acc):
        a = self.a
        regs = list(regs)
        a("v_max_u32 v%d, v%d, v%d" % (acc, regs[0], regs[1]))
        i = 2
        while i < len(regs):
            if i + 1 < len(regs):
                a("v_max3_u32 v%d, v%d, v%d, v%d" % (acc, acc, regs[i], regs[i + 1]))
                i += 2
            else:
                a("v_max_u32 v%d, v%d, v%d" % (acc, acc, regs[i]))
                i += 1

    def barrier(self):
        self.a("s_waitcnt lgkmcnt(0)")
        self.a("s_barrier")

    def wo_loads(self, cg_sgpr, rows):
        a = self.a
        a("s_lshl_b32 %s, s6, 8" % S_A)
        a("s_lshl_b32 %s, %s, 6" % (S_B, S_DB))
        a("s_add_u32 %s, %s, %s" % (S_A, S_A, S_B))
        a("s_mul_i32 %s, %s, 896" % (S_A, S_A))
        a("s_lshl_b32 %s, %s, 7" % (S_B, cg_sgpr))
        a("s_add_u32 %s, %s, %s" % (S_A, S_A, S_B))
        a("v_mul_u32_u24 v5, %d, v4" % (8 * 896))
        a("v_lshl_add_u32 v5, v3, 3, v5")
        a("v_add_u32 v5, %s, v5" % S_A)
        for t in range(2):
            for jj in range(0, 8, 4):
                a("v_add_u32 v6, %d, v5" % ((t * 32 + jj) * 896))
                for u in range(4):
                    r = rows + 16 * t + 2 * (jj + u)
                    a("global_load_dwordx2 %s, v6, %s offset:%d %s" % (q(r, 2), P_WO, u * 896, self.nt))

    def stage6(self, cg_sgpr, fo, A2, D2, tb, out):
        a = self.a
        a("v_and_b32 v5, 3, v3")
        a("v_lshlrev_b32 v5, 7, v5")
        a("v_lshl_add_u32 v5, v4, 4, v5")
        a("ds_read_b128 %s, v5 offset:%d" % (q(A2), L_X5))
        a("ds_read_b128 %s, v5 offset:%d" % (q(A2 + 4), L_X5 + 64))
        a("s_mul_i32 %s, s2, 1792" % S_A)
        a("s_lshl_b32 %s, %s, 8" % (S_B, cg_sgpr))
        a("s_add_u32 %s, %s, %s" % (S_A, S_A, S_B))
        a("s_add_u32 %s, %s, 0x%x" % (S_A, S_A, WS_S6))
        a("v_lshlrev_b32 v6, 4, v3")
        a("v_add_u32 v6, %s, v6" % S_A)
        a("s_waitcnt lgkmcnt(0)")
        for e in range(4):
            a("v_mfma_f32_16x16x32_bf16 %s, %s, %s, 0" % (q(D2 + 4 * e), q(A2), q(fo + 4 * e)))
        for e in range(4):
            a("v_mfma_f32_16x16x32_bf16 %s, %s, %s, %s" % (q(D2 + 4 * e), q(A2 + 4), q(fo + 16 + 4 * e), q(D2 + 4 * e)))
        self.nop(4)
        for e in range(4):
            d = D2 + 4 * e
            a("v_add_f32 v%d, v%d, v%d" % (d, d, d + 1))
            a("v_add_f32 v%d, v%d, v%d" % (d + 2, d + 2, d + 3))
            a("v_add_f32 v%d, v%d, v%d" % (d, d, d + 2))
        self.tag_quad(out, [D2, D2 + 4, D2 + 8, D2 + 12], tb)
        a("s_mov_b64 exec, 0xffff")
        a("global_store_dwordx4 v6, %s, %s sc1" % (q(out), P_WS))
        a("s_mov_b64 exec, -1")

    def build(self):
        a = self.a
        self.stamp(0)
        a("s_cmp_ge_u32 s2, 256")
        a("s_cbranch_scc1 L_end")
        a("s_load_dwordx16 s[8:23], s[0:1], 0")
        a("s_load_dwordx8 s[24:31], s[0:1], 64")
        a("s_load_dwordx4 s[32:35], s[0:1], 96")
        a("v_and_b32 v1, 63, v0")
        a("v_lshrrev_b32 v2, 6, v0")
        a("v_and_b32 v3, 15, v1")
        a("v_readfirstlane_b32 s3, v2")
        a("v_lshrrev_b32 v4, 4, v1")
        a("s_and_b32 s4, s2, 7")
        a("s_lshr_b32 s5, s2, 3")
        a("s_lshr_b32 s7, s5, 4")
        a("s_lshl_b32 s6, s4, 1")
        a("s_add_u32 s6, s6, s7")
        a("s_and_b32 s7, s5, 15")
        a("s_mov_b32 %s, 0x05040100" % S_SELLO)
        a("s_mov_b32 %s, 0x07060302" % S_SELHI)
        a("s_mov_b32 %s, 0xff" % S_FF)
        a("s_and_b32 %s, s7, 3" % S_DB)
        a("s_lshr_b32 %s, s7, 2" % S_CB)
        a("s_and_b32 %s, s3, 3" % S_W)
        a("s_cmp_ge_u32 s3, 8")
        a("s_cbranch_scc1 L_bc")
        a("s_cmp_ge_u32 s3, 4")
        a("s_cbranch_scc1 L_g1")
        self.g0()
        a("L_g1:")
        self.g1()
        a("L_bc:")
        self.bc()
        a("L_end:")
        a("s_endpgm")

    def g0(self):
        a = self.a
        nt = self.nt
        TB = 120
        a("v_lshlrev_b32 v5, 4, v1")
        a("s_lshl_b32 %s, s7, 6" % S_A)
        a("v_lshlrev_b32 v6, 4, v4")
        a("v_add_u32 v6, %s, v6" % S_A)
        for i in range(4):
            a("v_mov_b32 v%d, 0" % (8 + i))
        a("s_lshl_b32 %s, s7, 18" % S_A)
        a("s_lshl_b32 %s, s6, 9" % S_B)
        a("s_add_u32 %s, %s, %s" % (S_A, S_A, S_B))
        a("s_lshl_b32 %s, %s, 7" % (S_B, S_W))
        a("s_add_u32 %s, %s, %s" % (S_A, S_A, S_B))
        a("v_lshlrev_b32 v7, 16, v4")
        a("v_lshl_add_u32 v7, v3, 3, v7")
        a("v_add_u32 v7, %s, v7" % S_A)
        a("s_mov_b32 s52, -1")
        a("s_mov_b32 s53, 0x00ffffff")
        a("s_waitcnt lgkmcnt(0)")
        self.stamp(1)
        a("s_mov_b64 exec, %s" % S_EX)
        a("global_load_dwordx4 v[8:11], v5, %s" % P_X)
        a("s_mov_b64 exec, -1")
        a("s_cmp_ge_u32 s7, 14")
        a("s_cbranch_scc1 L_g0_nos1a")
        a("global_load_dwordx4 v[12:15], v6, %s" % P_X)
        for j in range(8):
            if j:
                a("v_add_u32 v7, 8192, v7")
            a("global_load_dwordx2 %s, v7, %s %s" % (q(16 + 2 * j, 2), P_WQ, nt))
        a("L_g0_nos1a:")
        a("v_mov_b32 v5, 0")
        a("global_load_dword v32, v5, %s sc1" % P_WS)
        a("s_lshl_b32 %s, s7, 19" % S_A)
        a("s_lshl_b32 %s, s6, 9" % S_B)
        a("s_add_u32 %s, %s, %s" % (S_A, S_A, S_B))
        a("s_lshl_b32 %s, %s, 7" % (S_B, S_W))
        a("s_add_u32 %s, %s, %s" % (S_A, S_A, S_B))
        a("v_and_b32 v5, 7, v3")
        a("v_lshlrev_b32 v5, 13, v5")
        a("v_lshrrev_b32 v6, 3, v3")
        a("v_lshl_add_u32 v5, v6, 6, v5")
        a("v_lshl_add_u32 v5, v4, 4, v5")
        a("v_add_u32 v5, %s, v5" % S_A)
        for k in range(8):
            if k:
                a("v_add_u32 v5, %d, v5" % (8 * 8192))
            a("global_load_dwordx4 %s, v5, %s %s" % (q(36 + 4 * k), P_WUK, nt))
        for i in range(4):
            a("v_mov_b32 v%d, -1" % (68 + i))
        a("s_lshl_b32 %s, s2, 2" % S_A)
        a("s_add_u32 %s, %s, %s" % (S_A, S_A, S_W))
        a("s_lshl_b32 %s, %s, 10" % (S_A, S_A))
        a("s_add_u32 %s, %s, 0x%x" % (S_A, S_A, WS_SENT))
        a("v_lshlrev_b32 v5, 4, v1")
        a("v_add_u32 v5, %s, v5" % S_A)
        a("global_store_dwordx4 v5, v[68:71], %s sc1" % P_WS)
        a("s_cmp_ge_u32 s7, 14")
        a("s_cbranch_scc1 L_g0_w10")
        a("s_waitcnt vmcnt(19)")
        a("s_branch L_g0_ln")
        a("L_g0_w10:")
        a("s_waitcnt vmcnt(10)")
        a("L_g0_ln:")
        self.stamp(2)
        for i in range(4):
            self.unpack(8 + i, 72 + 2 * i, 73 + 2 * i)
        a("v_add_f32 v80, v72, v73")
        a("v_add_f32 v81, v74, v75")
        a("v_add_f32 v82, v76, v77")
        a("v_add_f32 v83, v78, v79")
        a("v_add_f32 v80, v80, v81")
        a("v_add_f32 v82, v82, v83")
        a("v_add_f32 v80, v80, v82")
        self.wave_sum_to_sgpr(80, S_A)
        a("v_mov_b32 v81, 0x3b124925")
        a("v_mul_f32 v84, %s, v81" % S_A)
        a("v_mov_b32 v80, 0")
        a("v_mov_b32 v82, 0")
        a("s_mov_b64 exec, %s" % S_EX)
        for i in range(8):
            a("v_sub_f32 v%d, v%d, v84" % (72 + i, 72 + i))
        for i in range(8):
            acc = 80 if (i & 1) == 0 else 82
            a("v_fmac_f32 v%d, v%d, v%d" % (acc, 72 + i, 72 + i))
        a("v_add_f32 v80, v80, v82")
        a("s_mov_b64 exec, -1")
        self.wave_sum_to_sgpr(80, S_A)
        a("v_mul_f32 v85, %s, v81" % S_A)
        self.rb2(84, 85, 86)
        a("v_add_f32 v85, 0x3727c5ac, v85")
        self.rb(85, 86)
        a("v_sqrt_f32 v85, v85")
        self.nop(0)
        self.rb(85, 86)
        a("v_rcp_f32 v86, v85")
        a("v_readfirstlane_b32 %s, v84" % S_MEAN)
        a("v_readfirstlane_b32 %s, v85" % S_DEN)
        a("v_readfirstlane_b32 %s, v86" % S_RDEN)
        a("s_cmp_ge_u32 s7, 14")
        a("s_cbranch_scc1 L_g0_nos1b")
        a("s_waitcnt vmcnt(18)")
        for i in range(4):
            self.unpack(12 + i, 72 + 2 * i, 73 + 2 * i)
        self.xnorm(list(range(72, 80)), 80, 81)
        for i in range(4):
            a("v_cvt_pk_bf16_f32 v%d, v%d, v%d" % (88 + i, 72 + 2 * i, 73 + 2 * i))
        a("s_lshl_b32 %s, s6, 14" % S_A)
        a("s_lshl_b32 %s, %s, 12" % (S_B, S_W))
        a("s_add_u32 %s, %s, %s" % (S_A, S_A, S_B))
        a("s_lshl_b32 %s, s7, 6" % S_B)
        a("s_add_u32 %s, %s, %s" % (S_A, S_A, S_B))
        a("s_add_u32 %s, %s, 0x%x" % (S_A, S_A, WS_E1))
        a("v_lshrrev_b32 v5, 3, v3")
        a("v_lshlrev_b32 v5, 11, v5")
        a("v_and_b32 v6, 1, v3")
        a("v_lshl_add_u32 v5, v6, 10, v5")
        a("v_bfe_u32 v6, v3, 1, 2")
        a("v_lshl_add_u32 v5, v6, 4, v5")
        a("v_add_u32 v5, %s, v5" % S_A)
        a("s_waitcnt vmcnt(9)")
        self.stamp(3)
        self.perm_frags(16, 72)
        self.make_tags(32, TB)
        for e in range(4):
            a("v_mfma_f32_16x16x32_bf16 %s, %s, %s, 0" % (q(92 + 4 * e), q(88), q(72 + 4 * e)))
        self.nop(7)
        self.tag_quad(108, [92, 96, 100, 104], TB)
        a("s_mov_b64 exec, 0xffff")
        a("global_store_dwordx4 v5, v[108:111], %s sc1" % P_WS)
        a("s_mov_b64 exec, -1")
        a("s_branch L_g0_e1")
        a("L_g0_nos1b:")
        a("s_waitcnt vmcnt(9)")
        self.make_tags(32, TB)
        a("L_g0_e1:")
        self.stamp(4)
        a("s_lshl_b32 %s, s6, 14" % S_A)
        a("s_lshl_b32 %s, %s, 12" % (S_B, S_W))
        a("s_add_u32 %s, %s, %s" % (S_A, S_A, S_B))
        a("s_add_u32 %s, %s, 0x%x" % (S_A, S_A, WS_E1))
        a("v_lshlrev_b32 v5, 6, v3")
        a("v_lshl_add_u32 v5, v4, 4, v5")
        a("v_add_u32 v5, %s, v5" % S_A)
        for i in range(16):
            a("v_mov_b32 v%d, 0" % (72 + i))
        a("s_mov_b32 s52, 0x3fff3fff")
        a("s_mov_b32 s53, 0x3fff3fff")
        a("s_waitcnt vmcnt(1)")
        for t in range(4):
            self.swap8(36 + 8 * t, 40 + 8 * t, 112)

        def ld():
            a("s_mov_b64 exec, %s" % S_EX)
            for k in range(4):
                a("global_load_dwordx4 %s, v5, %s offset:%d sc1" % (q(72 + 4 * k), P_WS, k * 1024))
        self.poll(1, ld, lambda: self.check_tags([72, 76, 80, 84], 112, TB), 112, "tag")
        self.stamp(5)
        for t in range(2):
            for hf in range(2):
                s = 72 + 8 * t + 4 * hf
                a("v_cvt_pk_bf16_f32 v%d, v%d, v%d" % (88 + 4 * t + 2 * hf, s, s + 1))
                a("v_cvt_pk_bf16_f32 v%d, v%d, v%d" % (88 + 4 * t + 2 * hf + 1, s + 2, s + 3))
        self.nop(1)
        for t in range(4):
            a("v_mfma_f32_16x16x32_bf16 %s, %s, %s, 0" % (q(96 + 4 * t), q(88), q(36 + 8 * t)))
        for t in range(4):
            a("v_mfma_f32_16x16x32_bf16 %s, %s, %s, %s" % (q(96 + 4 * t), q(92), q(40 + 8 * t), q(96 + 4 * t)))
        a("s_lshl_b32 %s, %s, 8" % (S_A, S_W))
        a("v_lshlrev_b32 v5, 2, v1")
        a("v_add_u32 v5, %s, v5" % S_A)
        self.nop(2)
        for t in range(4):
            d = 96 + 4 * t
            a("v_add_f32 v%d, v%d, v%d" % (d, d, d + 1))
            a("v_add_f32 v%d, v%d, v%d" % (d + 2, d + 2, d + 3))
            a("v_add_f32 v%d, v%d, v%d" % (d, d, d + 2))
        self.swap_reduce4(96, 100, 104, 108)
        a("ds_write_b32 v5, v96 offset:%d" % L_QAP)
        self.barrier()
        self.stamp(6)
        a("s_cmp_lg_u32 %s, 0" % S_W)
        a("s_cbranch_scc1 L_g0_gather")
        a("v_lshlrev_b32 v5, 4, v3")
        for wv in range(4):
            a("ds_read_b128 %s, v5 offset:%d" % (q(72 + 4 * wv), L_QAP + wv * 256))
        a("s_lshl_b32 %s, s7, 12" % S_A)
        a("s_lshl_b32 %s, s6, 6" % S_B)
        a("s_add_u32 %s, %s, %s" % (S_A, S_A, S_B))
        a("s_add_u32 %s, %s, 0x%x" % (S_A, S_A, WS_E2))
        a("v_lshrrev_b32 v5, 3, v3")
        a("v_lshlrev_b32 v5, 11, v5")
        a("v_and_b32 v6, 1, v3")
        a("v_lshl_add_u32 v5, v6, 10, v5")
        a("v_bfe_u32 v6, v3, 1, 2")
        a("v_lshl_add_u32 v5, v6, 4, v5")
        a("v_add_u32 v5, %s, v5" % S_A)
        a("s_waitcnt lgkmcnt(0)")
        for i in range(4):
            a("v_add_f32 v%d, v%d, v%d" % (72 + i, 72 + i, 76 + i))
            a("v_add_f32 v%d, v%d, v%d" % (80 + i, 80 + i, 84 + i))
        for i in range(4):
            a("v_add_f32 v%d, v%d, v%d" % (72 + i, 72 + i, 80 + i))
        self.tag_quad(108, [72, 73, 74, 75], TB)
        a("s_mov_b64 exec, 0xffff")
        a("global_store_dwordx4 v5, v[108:111], %s sc1" % P_WS)
        a("s_mov_b64 exec, -1")
        a("L_g0_gather:")
        self.stamp(7)
        a("s_lshl_b32 %s, %s, 14" % (S_A, S_W))
        a("s_add_u32 %s, %s, 0x%x" % (S_A, S_A, WS_E2))
        a("v_lshlrev_b32 v5, 12, v4")
        a("v_lshl_add_u32 v5, v3, 6, v5")
        a("v_add_u32 v5, %s, v5" % S_A)
        a("v_lshlrev_b32 v6, 6, v3")
        a("v_lshl_add_u32 v6, v4, 4, v6")
        a("v_add_u32 v6, %s, v6" % S_A)

        def ldw():
            a("global_load_dwordx4 v[72:75], v5, %s offset:%d sc1" % (P_WS, 3 * 1024 + 48))
        self.poll(2, ldw, lambda: self.check_tags([72], 112, TB), 112, "tag")
        self.stamp(8)

        def ldp():
            for k4 in range(4):
                a("v_add_u32 v7, %d, v6" % (k4 * 4096))
                for k in range(4):
                    a("global_load_dwordx4 %s, v7, %s offset:%d sc1" % (q(8 + 4 * (k4 * 4 + k)), P_WS, k * 1024))
        self.poll(3, ldp, lambda: self.check_tags([8 + 4 * k for k in range(16)], 112, TB), 112, "tag")
        self.stamp(9)
        a("s_lshl_b32 %s, %s, 13" % (S_A, S_W))
        a("v_lshlrev_b32 v5, 4, v1")
        a("v_add_u32 v5, %s, v5" % S_A)
        for T in range(8):
            s = 8 + 8 * T
            d = 72 + 4 * T
            a("v_cvt_pk_bf16_f32 v%d, v%d, v%d" % (d, s, s + 1))
            a("v_cvt_pk_bf16_f32 v%d, v%d, v%d" % (d + 1, s + 2, s + 3))
            a("v_cvt_pk_bf16_f32 v%d, v%d, v%d" % (d + 2, s + 4, s + 5))
            a("v_cvt_pk_bf16_f32 v%d, v%d, v%d" % (d + 3, s + 6, s + 7))
            a("ds_write_b128 v5, %s offset:%d" % (q(d), L_QA + T * 1024))
        self.barrier()
        self.stamp(10)
        a("s_mul_i32 %s, s4, 28" % S_RP)
        a("s_add_u32 %s, %s, s5" % (S_RP, S_RP))
        a("s_cmp_ge_u32 s5, 28")
        a("s_cbranch_scc1 L_g0_nomlp1")
        for r in list(range(12, 16)) + [17] + list(range(20, 28)):
            a("v_mov_b32 v%d, 0" % r)
        a("s_mul_i32 %s, %s, 112" % (S_A, S_W))
        a("v_add_u32 v5, %s, v1" % S_A)
        a("v_lshlrev_b32 v6, 1, v5")
        a("v_mul_u32_u24 v5, 3584, v5")
        a("s_lshl_b32 %s, %s, 4" % (S_B, S_RP))
        a("v_add_u32 v5, %s, v5" % S_B)
        a("v_add_u32 v7, %d, v5" % (64 * 3584))
        a("global_load_dwordx4 v[8:11], v5, %s %s" % (P_W1, self.o.get("w1pol", nt)))
        a("global_load_ushort v16, v6, %s" % P_X)
        a("s_mov_b32 s52, -1")
        a("s_mov_b32 s53, 0x0000ffff")
        a("s_mov_b64 exec, %s" % S_EX)
        a("global_load_dwordx4 v[12:15], v7, %s %s" % (P_W1, self.o.get("w1pol", nt)))
        a("global_load_ushort v17, v6, %s offset:128" % P_X)
        a("s_mov_b64 exec, -1")
        a("s_lshl_b32 %s, %s, 3" % (S_A, S_RP))
        a("v_add_u32 v5, %s, v4" % S_A)
        a("v_lshlrev_b32 v6, 1, v5")
        a("v_mul_u32_u24 v5, 896, v5")
        a("v_lshl_add_u32 v5, v3, 4, v5")
        a("s_mul_i32 %s, %s, 224" % (S_B, S_W))
        a("v_add_u32 v5, %s, v5" % S_B)
        a("global_load_ushort v28, v6, %s" % P_B1)
        a("global_load_ushort v29, v6, %s offset:8" % P_B1)
        a("s_mov_b32 s52, 0x3fff3fff")
        a("s_mov_b32 s53, 0x3fff3fff")
        a("s_mov_b64 exec, %s" % S_EX)
        a("global_load_dwordx4 v[20:23], v5, %s %s" % (P_W2, nt))
        a("global_load_dwordx4 v[24:27], v5, %s offset:%d %s" % (P_W2, 4 * 896, nt))
        a("s_mov_b64 exec, -1")
        a("L_g0_nomlp1:")
        a("s_add_u32 %s, %s, 4" % (S_C2, S_W))
        a("s_cmp_ge_u32 %s, 3" % S_W)
        a("s_cbranch_scc1 L_g0_nowo")
        self.wo_loads(S_C2, 32)
        a("L_g0_nowo:")
        a("s_barrier")
        a("s_cmp_ge_u32 s5, 28")
        a("s_cbranch_scc1 L_g0_nomlp2")
        a("s_cmp_ge_u32 %s, 3" % S_W)
        a("s_cbranch_scc1 L_g0_m1w")
        a("s_waitcnt vmcnt(20)")
        a("s_branch L_g0_m1")
        a("L_g0_m1w:")
        a("s_waitcnt vmcnt(4)")
        a("L_g0_m1:")
        a("v_lshlrev_b32 v16, 16, v16")
        a("v_lshlrev_b32 v17, 16, v17")
        self.xnorm([16, 17], 96, 97)
        self.rb2(16, 17, 96)
        for i in range(4):
            self.unpack(8 + i, 96 + 2 * i, 97 + 2 * i)
            self.unpack(12 + i, 104 + 2 * i, 105 + 2 * i)
        for u in range(8):
            a("v_mul_f32 v%d, v16, v%d" % (96 + u, 96 + u))
        for u in range(8):
            a("v_fmac_f32 v%d, v17, v%d" % (96 + u, 104 + u))
        self.nop(1)
        for u in range(4):
            a("v_permlane32_swap_b32 v%d, v%d" % (96 + u, 100 + u))
        self.nop(1)
        for u in range(4):
            a("v_add_f32 v%d, v%d, v%d" % (96 + u, 96 + u, 100 + u))
        self.nop(1)
        a("v_permlane16_swap_b32 v96, v97")
        a("v_permlane16_swap_b32 v98, v99")
        self.nop(1)
        a("v_add_f32 v96, v96, v97")
        a("v_add_f32 v98, v98, v99")
        self.row_allreduce("v_add_f32", [96, 98])
        a("v_and_b32 v5, 1, v4")
        a("v_lshrrev_b32 v6, 1, v4")
        a("v_lshl_add_u32 v5, v6, 2, v5")
        a("v_lshlrev_b32 v5, 4, v5")
        a("s_lshl_b32 %s, %s, 2" % (S_A, S_W))
        a("v_add_u32 v5, %s, v5" % S_A)
        a("ds_write_b32 v5, v96 offset:%d" % L_H)
        a("ds_write_b32 v5, v98 offset:%d" % (L_H + 32))
        a("L_g0_nomlp2:")
        self.barrier()
        self.stamp(11)
        a("s_cmp_ge_u32 s5, 28")
        a("s_cbranch_scc1 L_g0_nomlp3")
        a("v_lshlrev_b32 v5, 4, v4")
        a("ds_read_b128 v[96:99], v5 offset:%d" % L_H)
        a("ds_read_b128 v[100:103], v5 offset:%d" % (L_H + 64))
        a("s_cmp_ge_u32 %s, 3" % S_W)
        a("s_cbranch_scc1 L_g0_m2w")
        a("s_waitcnt vmcnt(16)")
        a("s_branch L_g0_m2")
        a("L_g0_m2w:")
        a("s_waitcnt vmcnt(0)")
        a("L_g0_m2:")
        a("s_waitcnt lgkmcnt(0)")
        a("v_add_f32 v96, v96, v97")
        a("v_add_f32 v98, v98, v99")
        a("v_add_f32 v100, v100, v101")
        a("v_add_f32 v102, v102, v103")
        a("v_add_f32 v16, v96, v98")
        a("v_add_f32 v17, v100, v102")
        self.rb2(16, 17, 96)
        a("v_lshlrev_b32 v28, 16, v28")
        a("v_lshlrev_b32 v29, 16, v29")
        a("v_add_f32 v16, v16, v28")
        a("v_add_f32 v17, v17, v29")
        self.rb2(16, 17, 96)
        a("v_max_f32 v16, 0, v16")
        a("v_max_f32 v17, 0, v17")
        a("v_mul_f32 v16, v16, v16")
        a("v_mul_f32 v17, v17, v17")
        self.rb2(16, 17, 96)
        for i in range(4):
            self.unpack(20 + i, 96 + 2 * i, 97 + 2 * i)
            self.unpack(24 + i, 104 + 2 * i, 105 + 2 * i)
        for u in range(8):
            a("v_mul_f32 v%d, v16, v%d" % (96 + u, 96 + u))
        for u in range(8):
            a("v_fmac_f32 v%d, v17, v%d" % (96 + u, 104 + u))
        self.nop(1)
        for u in range(4):
            a("v_permlane32_swap_b32 v%d, v%d" % (96 + u, 100 + u))
        self.nop(1)
        for u in range(4):
            a("v_add_f32 v%d, v%d, v%d" % (96 + u, 96 + u, 100 + u))
        for u in range(4):
            a("v_mov_b32 v%d, v%d" % (100 + u, 96 + u))
        self.nop(1)
        for u in range(4):
            a("v_permlane16_swap_b32 v%d, v%d" % (96 + u, 100 + u))
        self.nop(1)
        for u in range(4):
            a("v_add_f32 v%d, v%d, v%d" % (96 + u, 96 + u, 100 + u))
        self.tag_quad(108, [96, 97, 98, 99], TB)
        a("s_mul_i32 %s, %s, 1792" % (S_A, S_RP))
        a("s_mul_i32 %s, %s, 448" % (S_B, S_W))
        a("s_add_u32 %s, %s, %s" % (S_A, S_A, S_B))
        a("s_add_u32 %s, %s, 0x%x" % (S_A, S_A, WS_O))
        a("v_lshrrev_b32 v6, 1, v4")
        a("v_lshlrev_b32 v6, 4, v6")
        a("v_lshl_add_u32 v5, v3, 5, v6")
        a("v_add_u32 v5, %s, v5" % S_A)
        a("s_mov_b32 s52, 0x00003fff")
        a("s_mov_b32 s53, 0x00003fff")
        a("s_mov_b64 exec, %s" % S_EX)
        a("global_store_dwordx4 v5, v[108:111], %s sc1" % P_WS)
        a("s_mov_b64 exec, -1")
        a("s_waitcnt vmcnt(1)")
        a("s_branch L_g0_mdone")
        a("L_g0_nomlp3:")
        a("s_waitcnt vmcnt(0)")
        a("L_g0_mdone:")
        a("s_cmp_ge_u32 %s, 3" % S_W)
        a("s_cbranch_scc1 L_g0_fin")
        self.perm_frags(32, 64)
        self.perm_frags(48, 80)
        a("s_barrier")
        self.stamp(12)
        self.stage6(S_C2, 64, 8, 16, TB, 108)
        self.stamp(13)
        self.dump_stamps(14)
        a("s_endpgm")
        a("L_g0_fin:")
        a("s_barrier")
        self.stamp(12)
        a("s_cmp_ge_u32 s2, 112")
        a("s_cbranch_scc1 L_g0_finend")
        a("s_lshl_b32 %s, s2, 3" % S_A)
        a("v_lshlrev_b32 v7, 1, v4")
        a("v_add_u32 v7, %s, v7" % S_A)
        a("global_load_ushort v60, v7, %s" % P_B2)
        a("global_load_ushort v61, v7, %s" % P_X)
        a("s_lshl_b32 %s, s2, 4" % S_A)
        a("v_mul_u32_u24 v5, 1792, v1")
        a("v_add_u32 v5, %s, v5" % S_A)
        for i in range(4):
            a("v_mov_b32 v%d, 0" % (20 + i))
        a("s_mov_b32 s52, -1")
        a("s_mov_b32 s53, 0")

        def ldo():
            for k in range(3):
                a("v_add_u32 v6, 0x%x, v5" % (WS_O + k * 64 * 1792))
                a("global_load_dwordx4 %s, v6, %s sc1" % (q(8 + 4 * k), P_WS))
            a("v_add_u32 v6, 0x%x, v5" % (WS_O + 3 * 64 * 1792))
            a("s_mov_b64 exec, %s" % S_EX)
            a("global_load_dwordx4 v[20:23], v6, %s sc1" % P_WS)
            a("s_mov_b64 exec, -1")

        def cko():
            self.check_tags([8, 12, 16], 112, TB)
            a("s_mov_b64 exec, %s" % S_EX)
            for i in range(4):
                a("v_bitop3_b32 v112, v112, v%d, v%d bitop3:0xf6" % (20 + i, TB + i))
            a("s_mov_b64 exec, -1")
        self.poll(6, ldo, cko, 112, "tag")

        def red(base):
            for i in range(4):
                a("v_add_f32 v%d, v%d, v%d" % (base + i, base + i, base + 4 + i))
                a("v_add_f32 v%d, v%d, v%d" % (base + 8 + i, base + 8 + i, base + 12 + i))
            for i in range(4):
                a("v_add_f32 v%d, v%d, v%d" % (base + i, base + i, base + 8 + i))
            self.swap_reduce4(base, base + 1, base + 2, base + 3)
            self.row_allreduce("v_add_f32", [base])
        red(8)
        self.rb(8, 9)
        a("v_lshlrev_b32 v60, 16, v60")
        a("v_lshlrev_b32 v61, 16, v61")
        a("v_add_f32 v8, v8, v60")
        self.rb(8, 9)
        a("v_mul_f32 v9, 0xbfb8aa3b, v8")
        a("v_exp_f32 v9, v9")
        self.nop(0)
        a("v_add_f32 v9, 1.0, v9")
        a("v_rcp_f32 v9, v9")
        self.nop(0)
        a("v_mul_f32 v62, v8, v9")
        self.rb(62, 9)
        self.stamp(13)

        def lds_():
            for k in range(4):
                a("v_add_u32 v6, 0x%x, v5" % (WS_S6 + k * 64 * 1792))
                a("global_load_dwordx4 %s, v6, %s sc1" % (q(24 + 4 * k), P_WS))
        self.poll(7, lds_, lambda: self.check_tags([24, 28, 32, 36], 112, TB), 112, "tag")
        self.stamp(14)
        red(24)
        self.rb(24, 9)
        a("v_mul_f32 v24, v24, v62")
        self.rb(24, 9)
        a("v_add_f32 v24, v61, v24")
        a("v_cvt_pk_bf16_f32 v24, v24, v24")
        a("s_mov_b32 s52, 0x00010001")
        a("s_mov_b32 s53, 0x00010001")
        a("s_mov_b64 exec, %s" % S_EX)
        a("global_store_short v7, v24, %s" % P_OUT)
        a("s_mov_b64 exec, -1")
        a("s_cmp_lg_u32 s2, 0")
        a("s_cbranch_scc1 L_g0_finend")
        a("v_mov_b32 v5, 0")
        a("v_mov_b32 v6, %s" % S_T)
        a("s_mov_b64 exec, 1")
        a("global_store_dword v5, v6, %s sc1" % P_WS)
        a("s_mov_b64 exec, -1")
        a("L_g0_finend:")
        self.stamp(15)
        self.dump_stamps(16)
        a("s_endpgm")

    def g1(self):
        a = self.a
        nt = self.nt
        TB = 120
        a("s_waitcnt lgkmcnt(0)")
        a("v_mov_b32 v5, 0")
        a("global_load_dword v112, v5, %s sc1" % P_WS)
        a("s_lshl_b32 %s, %s, 2" % (S_C2, S_CB))
        a("s_add_u32 %s, %s, %s" % (S_C2, S_C2, S_W))
        a("s_lshl_b32 %s, %s, 19" % (S_A, S_C2))
        a("s_lshl_b32 %s, s6, 9" % S_B)
        a("s_add_u32 %s, %s, %s" % (S_A, S_A, S_B))
        a("s_lshl_b32 %s, %s, 7" % (S_B, S_DB))
        a("s_add_u32 %s, %s, %s" % (S_A, S_A, S_B))
        a("v_and_b32 v7, 1, v4")
        a("v_lshlrev_b32 v7, 5, v7")
        a("v_lshrrev_b32 v6, 1, v4")
        a("v_add_u32 v7, v7, v6")
        a("v_lshlrev_b32 v7, 13, v7")
        a("v_lshl_add_u32 v7, v3, 3, v7")
        a("v_add_u32 v7, %s, v7" % S_A)
        a("s_waitcnt vmcnt(0)")
        self.make_tags(112, TB)
        a("s_barrier")
        self.stamp(6)
        for t in range(2):
            for jj in range(8):
                a("v_add_u32 v6, %d, v7" % ((jj * 4 + 2 * t) * 8192))
                a("global_load_dwordx2 %s, v6, %s %s" % (q(8 + 16 * t + 2 * jj, 2), P_WUV, nt))
        self.wo_loads(S_W, 40)
        a("s_barrier")
        a("s_barrier")
        a("s_lshl_b32 %s, s6, 10" % S_A)
        a("s_add_u32 %s, %s, 0x%x" % (S_A, S_A, WS_M))
        a("v_lshlrev_b32 v5, 4, v1")
        a("v_add_u32 v5, %s, v5" % S_A)
        a("v_add_u32 v6, 0x4000, v5")
        a("s_lshl_b32 %s, %s, 4" % (S_A, S_C2))
        a("s_add_u32 %s, %s, s6" % (S_A, S_A))
        a("s_lshl_b32 %s, %s, 11" % (S_A, S_A))
        a("s_add_u32 %s, %s, 0x%x" % (S_A, S_A, WS_E4))
        a("v_lshlrev_b32 v7, 7, v3")
        a("v_lshl_add_u32 v7, v4, 4, v7")
        a("v_add_u32 v7, %s, v7" % S_A)
        a("s_barrier")
        self.stamp(11)
        a("s_waitcnt vmcnt(0)")
        self.stamp(1)
        self.perm_frags(8, 72)
        self.perm_frags(24, 88)
        self.perm_frags(40, 8)
        self.perm_frags(56, 24)

        def lds_():
            a("global_load_dwordx4 v[40:43], v5, %s sc1" % P_WS)
            a("global_load_dwordx4 v[44:47], v6, %s sc1" % P_WS)
        self.poll(4, lds_, lambda: self.check_sent(range(40, 48), 112), 112, "sent")
        self.stamp(2)
        a("v_max_f32 v48, v40, v41")
        a("v_max3_f32 v48, v48, v42, v43")
        self.quad_allreduce("v_max_f32", [48])
        a("v_mov_b32 v49, v48")
        self.row_allreduce("v_max_f32", [49], steps=(4, 8))
        self.xswap_allreduce("v_max_f32", 49, 50, 16)
        self.xswap_allreduce("v_max_f32", 49, 50, 32)
        for i in range(4):
            a("v_sub_f32 v%d, v%d, v49" % (40 + i, 40 + i))
        a("v_sub_f32 v48, v48, v49")
        for i in range(4):
            a("v_exp_f32 v%d, v%d" % (40 + i, 40 + i))
        a("v_exp_f32 v48, v48")
        a("v_mul_f32 v50, v40, v44")
        a("v_fmac_f32 v50, v41, v45")
        a("v_fmac_f32 v50, v42, v46")
        a("v_fmac_f32 v50, v43, v47")
        self.quad_allreduce("v_add_f32", [50])
        self.row_allreduce("v_add_f32", [50], steps=(4, 8))
        self.xswap_allreduce("v_add_f32", 50, 51, 16)
        self.xswap_allreduce("v_add_f32", 50, 51, 32)
        a("v_rcp_f32 v50, v50")
        a("v_lshrrev_b32 v51, 2, v1")
        a("v_lshlrev_b32 v51, 2, v51")
        a("s_lshl_b32 %s, %s, 6" % (S_A, S_W))
        a("v_add_u32 v51, %s, v51" % S_A)
        a("v_mul_f32 v48, v48, v50")
        a("ds_write_b32 v51, v48 offset:%d" % L_WG)
        a("v_lshlrev_b32 v51, 4, v4")
        a("v_add_u32 v51, %s, v51" % S_A)
        a("s_waitcnt lgkmcnt(0)")
        a("ds_read_b128 v[40:43], v51 offset:%d" % L_WG)
        a("s_lshl_b32 %s, %s, 7" % (S_A, S_W))
        a("v_lshl_add_u32 v5, v3, 2, v4")
        a("v_lshlrev_b32 v5, 1, v5")
        a("v_add_u32 v5, %s, v5" % S_A)
        self.stamp(3)

        def lde():
            a("global_load_dwordx4 v[44:47], v7, %s sc1" % P_WS)
            a("global_load_dwordx4 v[48:51], v7, %s offset:64 sc1" % P_WS)
        self.poll(5, lde, lambda: self.check_sent(range(44, 52), 112), 112, "sent")
        self.stamp(4)
        for e in range(4):
            a("v_mfma_f32_16x16x32_bf16 %s, %s, %s, 0" % (q(52 + 4 * e), q(44), q(72 + 4 * e)))
        for e in range(4):
            a("v_mfma_f32_16x16x32_bf16 %s, %s, %s, %s" % (q(52 + 4 * e), q(48), q(88 + 4 * e), q(52 + 4 * e)))
        a("s_waitcnt lgkmcnt(0)")
        self.nop(4)
        for e in range(4):
            d = 52 + 4 * e
            a("v_mul_f32 v%d, v40, v%d" % (d, d))
            a("v_fmac_f32 v%d, v41, v%d" % (d, d + 1))
            a("v_fmac_f32 v%d, v42, v%d" % (d, d + 2))
            a("v_fmac_f32 v%d, v43, v%d" % (d, d + 3))
        self.swap_reduce4(52, 56, 60, 64)
        a("v_cvt_pk_bf16_f32 v52, v52, v52")
        a("ds_write_b16 v5, v52 offset:%d" % L_X5)
        self.barrier()
        self.stamp(12)
        self.stage6(S_W, 8, 40, 48, TB, 108)
        self.stamp(13)
        self.dump_stamps(14)
        a("s_endpgm")

    def bc(self):
        a = self.a
        nt = self.nt
        a("s_sub_u32 %s, s3, 8" % S_W)
        a("s_lshl_b32 %s, s6, 4" % S_C2)
        a("s_add_u32 %s, %s, s7" % (S_C2, S_C2))
        a("s_lshl_b32 %s, %s, 16" % (S_A, S_C2))
        a("s_lshl_b32 %s, %s, 8" % (S_B, S_W))
        a("s_add_u32 %s, %s, %s" % (S_A, S_A, S_B))
        a("v_and_b32 v5, 7, v3")
        a("v_lshlrev_b32 v5, 11, v5")
        a("v_lshrrev_b32 v6, 3, v3")
        a("v_lshl_add_u32 v5, v6, 6, v5")
        a("v_lshl_add_u32 v5, v4, 4, v5")
        a("v_add_u32 v5, %s, v5" % S_A)
        a("s_lshl_b32 %s, s6, 20" % S_A)
        a("s_lshl_b32 %s, %s, 17" % (S_B, S_W))
        a("s_add_u32 %s, %s, %s" % (S_A, S_A, S_B))
        a("s_lshl_b32 %s, s7, 7" % S_B)
        a("s_add_u32 %s, %s, %s" % (S_A, S_A, S_B))
        a("v_lshlrev_b32 v7, 14, v4")
        a("v_lshl_add_u32 v7, v3, 3, v7")
        a("v_add_u32 v7, %s, v7" % S_A)
        a("s_waitcnt lgkmcnt(0)")
        self.stamp(1)
        if self.o.get("bcdelay"):
            a("s_sleep %d" % self.o["bcdelay"])
        for rg in range(4):
            if rg:
                a("v_add_u32 v5, %d, v5" % (8 * 2048))
            for ln in range(2):
                a("global_load_dwordx4 %s, v5, %s offset:%d %s" % (q(8 + 4 * (rg * 2 + ln)), P_C, ln * 128, nt))

        def col_loads():
            for blk in range(2):
                for j2 in range(0, 8, 2):
                    a("v_add_u32 v6, %d, v7" % ((blk * 32 + j2) * 2048))
                    for u in range(2):
                        a("global_load_dwordx2 %s, v6, %s offset:%d %s" % (q(40 + 16 * blk + 2 * (j2 + u), 2), P_C, u * 2048, self.o.get("colpol", nt)))
        colpos = self.o.get("colpos", "start")
        if colpos == "start":
            col_loads()
        a("s_barrier")
        self.stamp(6)
        if colpos == "b1":
            col_loads()
        a("s_waitcnt vmcnt(16)")
        self.stamp(2)
        for kt in range(2):
            for ln in range(2):
                X = 8 + 4 * ((2 * kt) * 2 + ln)
                Y = 8 + 4 * ((2 * kt + 1) * 2 + ln)
                self.swap8(X, Y, 112)
        a("s_lshl_b32 %s, %s, 12" % (S_A, S_W))
        a("v_lshlrev_b32 v5, 4, v1")
        a("v_add_u32 v5, %s, v5" % S_A)
        a("s_mul_i32 %s, %s, 2304" % (S_A, S_W))
        a("v_mul_u32_u24 v6, 144, v3")
        a("v_lshl_add_u32 v6, v4, 4, v6")
        a("v_add_u32 v6, %s, v6" % S_A)
        a("s_barrier")
        self.stamp(10)
        for k in range(4):
            a("ds_read_b128 %s, v5 offset:%d" % (q(72 + 4 * k), L_QA + k * 1024))
        first = True
        for ln in range(2):
            for s in range(2):
                k = 2 * ln + s
                a("s_waitcnt lgkmcnt(%d)" % (3 - k))
                for kt in range(2):
                    A = 8 + 4 * ((2 * kt + s) * 2 + ln)
                    D = 88 + 4 * kt
                    a("v_mfma_f32_16x16x32_bf16 %s, %s, %s, %s" % (q(D), q(A), q(72 + 4 * k), "0" if first else q(D)))
                first = False
        a("v_lshrrev_b32 v5, 5, v1")
        a("s_lshl_b32 %s, %s, 1" % (S_A, S_W))
        a("v_add_u32 v100, %s, v5" % S_A)
        a("v_and_b32 v101, 31, v1")
        a("v_mul_u32_u24 v5, 144, v100")
        a("v_lshl_add_u32 v5, v101, 2, v5")
        self.nop(2)
        a("ds_write_b128 v6, v[88:91] offset:%d" % L_SP)
        a("ds_write_b128 v6, v[92:95] offset:%d" % (L_SP + 64))
        self.barrier()
        self.stamp(3)
        for k in range(8):
            a("ds_read_b32 v%d, v5 offset:%d" % (72 + k, L_SP + k * 2304))
        a("s_lshl_b32 %s, %s, 10" % (S_A, S_C2))
        a("s_add_u32 %s, %s, 0x%x" % (S_A, S_A, WS_P))
        a("v_lshrrev_b32 v6, 1, v101")
        a("v_lshlrev_b32 v6, 2, v6")
        a("v_lshl_add_u32 v6, v100, 6, v6")
        a("v_add_u32 v6, %s, v6" % S_A)
        a("s_lshl_b32 %s, %s, 2" % (S_A, S_C2))
        a("s_add_u32 %s, %s, 0x%x" % (S_A, S_A, WS_M))
        a("v_lshlrev_b32 v102, 10, v100")
        a("v_add_u32 v102, %s, v102" % S_A)
        a("v_add_u32 v103, 0x4000, v102")
        a("s_waitcnt lgkmcnt(0)")
        a("v_add_f32 v72, v72, v73")
        a("v_add_f32 v74, v74, v75")
        a("v_add_f32 v76, v76, v77")
        a("v_add_f32 v78, v78, v79")
        a("v_add_f32 v72, v72, v74")
        a("v_add_f32 v76, v76, v78")
        a("v_add_f32 v72, v72, v76")
        self.rb(72, 73)
        a("v_mul_f32 v72, 0x3db8aa3b, v72")
        a("v_mov_b32 v73, v72")
        self.row_allreduce("v_max_f32", [73])
        self.xswap_allreduce("v_max_f32", 73, 74, 16)
        a("v_ceil_f32 v73, v73")
        a("v_sub_f32 v72, v72, v73")
        a("v_exp_f32 v72, v72")
        self.nop(1)
        a("v_mov_b32_dpp v74, v72 quad_perm:[1,1,3,3] row_mask:0xf bank_mask:0xf")
        a("v_mov_b32 v75, v72")
        a("v_cvt_pk_bf16_f32 v74, v72, v74")
        a("v_min_u32 v74, 0xfffffffe, v74")
        a("v_min_u32 v73, 0xfffffffe, v73")
        a("s_mov_b32 s52, 0x55555555")
        a("s_mov_b32 s53, 0x55555555")
        a("s_mov_b64 exec, %s" % S_EX)
        a("global_store_dword v6, v74, %s sc1" % P_WS)
        a("s_mov_b32 s52, 1")
        a("s_mov_b32 s53, 1")
        a("s_mov_b64 exec, %s" % S_EX)
        a("global_store_dword v102, v73, %s sc1" % P_WS)
        a("s_mov_b64 exec, -1")
        self.row_allreduce("v_add_f32", [75])
        self.xswap_allreduce("v_add_f32", 75, 76, 16)
        a("v_min_u32 v75, 0xfffffffe, v75")
        a("s_mov_b64 exec, %s" % S_EX)
        a("global_store_dword v103, v75, %s sc1" % P_WS)
        a("s_mov_b64 exec, -1")
        self.stamp(4)
        a("s_waitcnt vmcnt(3)")
        self.perm_frags(40, 8)
        self.perm_frags(56, 24)
        a("s_lshl_b32 %s, s6, 4" % S_A)
        a("s_lshl_b32 %s, %s, 1" % (S_B, S_W))
        a("s_add_u32 %s, %s, %s" % (S_B, S_A, S_B))
        a("s_lshl_b32 %s, %s, 10" % (S_D, S_B))
        a("s_add_u32 %s, %s, 0x%x" % (S_D, S_D, WS_P))
        a("v_lshlrev_b32 v5, 6, v3")
        a("v_lshl_add_u32 v5, v4, 4, v5")
        a("v_add_u32 v5, %s, v5" % S_D)
        a("s_lshl_b32 %s, %s, 2" % (S_A, S_A))
        a("s_add_u32 %s, %s, 0x%x" % (S_A, S_A, WS_M))
        a("v_lshlrev_b32 v6, 10, v3")
        a("v_lshl_add_u32 v7, v4, 4, v6")
        a("v_add_u32 v7, %s, v7" % S_A)
        a("s_lshl_b32 %s, %s, 2" % (S_B, S_B))
        a("s_add_u32 %s, %s, 0x%x" % (S_B, S_B, WS_M))
        a("v_add_u32 v6, %s, v6" % S_B)
        self.stamp(5)

        def ld3():
            a("global_load_dwordx4 v[40:43], v5, %s sc1" % P_WS)
            a("global_load_dwordx4 v[44:47], v5, %s offset:1024 sc1" % P_WS)
            a("global_load_dwordx4 v[48:51], v7, %s sc1" % P_WS)
            a("global_load_dwordx2 v[52:53], v6, %s sc1" % P_WS)
        self.poll(8, ld3, lambda: self.check_sent(range(40, 54), 112), 112, "sent")
        self.stamp(7)
        a("v_max_f32 v48, v48, v49")
        a("v_max3_f32 v48, v48, v50, v51")
        self.xswap_allreduce("v_max_f32", 48, 49, 16)
        self.xswap_allreduce("v_max_f32", 48, 49, 32)
        a("v_sub_f32 v52, v48, v52")
        a("v_sub_f32 v53, v48, v53")
        a("v_cvt_u32_f32 v52, v52")
        a("v_cvt_u32_f32 v53, v53")
        a("v_min_u32 v52, 0xff, v52")
        a("v_min_u32 v53, 0xff, v53")
        a("v_mul_u32_u24 v52, 0x800080, v52")
        a("v_mul_u32_u24 v53, 0x800080, v53")
        for i in range(4):
            a("v_pk_sub_u16 v%d, v%d, v52 clamp" % (40 + i, 40 + i))
        for i in range(4):
            a("v_pk_sub_u16 v%d, v%d, v53 clamp" % (44 + i, 44 + i))
        self.nop(1)
        for e in range(4):
            a("v_mfma_f32_16x16x32_bf16 %s, %s, %s, 0" % (q(56 + 4 * e), q(8 + 4 * e), q(40)))
        for e in range(4):
            a("v_mfma_f32_16x16x32_bf16 %s, %s, %s, %s" % (q(56 + 4 * e), q(24 + 4 * e), q(44), q(56 + 4 * e)))
        a("s_mul_i32 %s, %s, 4352" % (S_A, S_W))
        a("v_mul_u32_u24 v5, 272, v3")
        a("v_lshl_add_u32 v5, v4, 4, v5")
        a("v_add_u32 v5, %s, v5" % S_A)
        a("v_mul_u32_u24 v6, 272, v100")
        a("v_lshl_add_u32 v6, v101, 3, v6")
        for e in range(4):
            a("ds_write_b128 v5, %s offset:%d" % (q(56 + 4 * e), L_R4 + e * 64))
        self.barrier()
        self.stamp(11)
        for k in range(8):
            a("ds_read_b64 %s, v6 offset:%d" % (q(72 + 2 * k, 2), L_R4 + k * 4352))
        a("s_lshl_b32 %s, s7, 15" % S_A)
        a("s_lshl_b32 %s, s6, 7" % S_B)
        a("s_add_u32 %s, %s, %s" % (S_A, S_A, S_B))
        a("s_add_u32 %s, %s, 0x%x" % (S_A, S_A, WS_E4))
        a("v_lshlrev_b32 v5, 11, v100")
        a("v_lshl_add_u32 v5, v101, 2, v5")
        a("v_add_u32 v5, %s, v5" % S_A)
        a("s_waitcnt lgkmcnt(0)")
        for st in (8, 4, 2):
            for k in range(0, st):
                a("v_add_f32 v%d, v%d, v%d" % (72 + k, 72 + k, 72 + st + k))
        a("v_cvt_pk_bf16_f32 v72, v72, v73")
        a("v_min_u32 v72, 0xfffffffe, v72")
        a("global_store_dword v5, v72, %s sc1" % P_WS)
        self.stamp(8)
        self.dump_stamps(12)
        a("s_endpgm")


def make(path, **kw):
    k = K(**kw)
    k.build()
    build_file(path, ["grid=(256,1,1) block=(1024,1,1) lds=%d" % LDS_BYTES], [(NAME + "_kernel", k.a, 128, 100, 128)])


if __name__ == "__main__":
    make("k1.s")
    make("k1_st.s", stamps=True)
```

```python
import sys
from gen import *
import mk
from mk import K, q, P_X, P_C, P_WQ, P_WUK, P_WUV, P_WO, P_BX, P_W1, P_B1, P_W2, P_B2, P_OUT, P_DBG, P_WS
from mk import S_SELLO, S_SELHI, S_FF, S_MEAN, S_DEN, S_RDEN, S_T, S_CNT, S_A, S_B, S_C2, S_D, S_CMP, S_EX, S_W, S_RP, S_DB, S_CB

WS_EPOCH = 0
WS_F0 = 0x1000
WS_E2 = 0x2000
WS_E1 = 0x10000
WS_P = 0x50000
DUP = 0x88000
WS_E4 = 0x120000
WS_O = 0x168000
WS_S6 = 0x1A0000
RST = 144
PST = 16 * RST
P_WS2 = "s[96:97]"
S_SEL = "s[98:99]"
S_OK = "s39"
WS_STAMP = 0x400000
mk.WS_STAMP = WS_STAMP

L_AQ = 0x0
L_X5 = 0x2000
L_H = 0x0
L_ML = 0x400
L_XN = 0xC00
L_SP = 0x1400
L_O2 = 0x1400
L_W1 = 0x1400 + 69632
L_W2 = L_W1 + 0x4000
LDS_BYTES = L_W2 + 0x4000
S_B1 = "s49"

TB = 120


class K6(K):
    def ln_stats(self, xr):
        a = self.a
        for i in range(4):
            self.unpack(xr + i, 72 + 2 * i, 73 + 2 * i)
        a("v_add_f32 v80, v72, v73")
        a("v_add_f32 v81, v74, v75")
        a("v_add_f32 v82, v76, v77")
        a("v_add_f32 v83, v78, v79")
        a("v_add_f32 v80, v80, v81")
        a("v_add_f32 v82, v82, v83")
        a("v_add_f32 v80, v80, v82")
        self.wave_sum_to_sgpr(80, S_A)
        a("v_mov_b32 v81, 0x3b124925")
        a("v_mul_f32 v84, %s, v81" % S_A)
        a("v_mov_b32 v80, 0")
        a("v_mov_b32 v82, 0")
        a("s_mov_b64 exec, %s" % S_EX)
        for i in range(8):
            a("v_sub_f32 v%d, v%d, v84" % (72 + i, 72 + i))
        for i in range(8):
            acc = 80 if (i & 1) == 0 else 82
            a("v_fmac_f32 v%d, v%d, v%d" % (acc, 72 + i, 72 + i))
        a("v_add_f32 v80, v80, v82")
        a("s_mov_b64 exec, -1")
        self.wave_sum_to_sgpr(80, S_A)
        a("v_mul_f32 v85, %s, v81" % S_A)
        self.rb2(84, 85, 86)
        a("v_add_f32 v85, 0x3727c5ac, v85")
        self.rb(85, 86)
        a("v_sqrt_f32 v85, v85")
        self.nop(0)
        self.rb(85, 86)
        a("v_rcp_f32 v86, v85")
        a("v_readfirstlane_b32 %s, v84" % S_MEAN)
        a("v_readfirstlane_b32 %s, v85" % S_DEN)
        a("v_readfirstlane_b32 %s, v86" % S_RDEN)
        self.nop(1)

    def setex(self, lo, hi, pair=(52, 53)):
        a = self.a
        a("s_mov_b32 s%d, 0x%x" % (pair[0], lo))
        a("s_mov_b32 s%d, 0x%x" % (pair[1], hi))

    def tags_from_sgpr(self):
        a = self.a
        a("s_add_u32 %s, %s, 0x01010101" % (S_T, S_T))
        a("s_and_b32 %s, %s, 0xff" % (S_A, S_T))
        a("v_mov_b32 v%d, %s" % (TB, S_A))
        a("s_bfe_u32 %s, %s, 0x80008" % (S_A, S_T))
        a("v_mov_b32 v%d, %s" % (TB + 1, S_A))
        a("s_bfe_u32 %s, %s, 0x80010" % (S_A, S_T))
        a("v_mov_b32 v%d, %s" % (TB + 2, S_A))
        a("s_lshr_b32 %s, %s, 24" % (S_A, S_T))
        a("v_mov_b32 v%d, %s" % (TB + 3, S_A))

    def tr_frags(self, raw, fr, tmp):
        a = self.a
        for e in range(8):
            for qq in range(4):
                lo = raw + 4 * (2 * qq) + (e >> 1)
                hi = raw + 4 * (2 * qq + 1) + (e >> 1)
                a("v_perm_b32 v%d, v%d, v%d, %s" % (fr + 4 * e + qq, hi, lo, S_SELHI if (e & 1) else S_SELLO))
        for e in range(4):
            self.swap8(fr + 4 * e, fr + 16 + 4 * e, tmp)

    def scalar_watch(self, name, addr_sgpr_off, nlines):
        a = self.a
        a("s_add_u32 s56, s34, %s" % addr_sgpr_off)
        a("s_addc_u32 s57, s35, 0")
        a("s_and_b32 %s, %s, 0xff" % (S_A, S_T))
        a("s_mul_i32 s58, %s, 0x01010101" % S_A)
        a("s_mov_b32 s59, s58")
        a("s_mov_b32 %s, 0" % S_CNT)
        if self.stamps:
            a("s_waitcnt lgkmcnt(0)")
            for k in range(16):
                a("v_writelane_b32 v127, s%d, %d" % (64 + 2 * k, k))
        a("%s:" % name)
        for k in range(nlines):
            a("s_load_dwordx2 s[%d:%d], s[56:57], %d glc" % (64 + 2 * k, 65 + 2 * k, 128 * k))
        a("s_waitcnt lgkmcnt(0)")
        a("s_xor_b64 s[50:51], s[64:65], s[58:59]")
        for k in range(1, nlines):
            a("s_xor_b64 s[96:97], s[%d:%d], s[58:59]" % (64 + 2 * k, 65 + 2 * k))
            a("s_or_b64 s[50:51], s[50:51], s[96:97]")
        a("s_add_u32 %s, %s, 1" % (S_CNT, S_CNT))
        a("s_cmp_eq_u64 s[50:51], 0")
        a("s_cbranch_scc1 %s_done" % name)
        a("s_cmp_lt_u32 %s, %d" % (S_CNT, mk.LIMIT))
        a("s_cbranch_scc1 %s" % name)
        a("%s_done:" % name)
        if self.stamps:
            for k in range(16):
                a("v_readlane_b32 s%d, v127, %d" % (64 + 2 * k, k))

    def poll2(self, code, loads, check, acc, mode, first_wait=0):
        a = self.a
        lp = a.label("Lpoll")
        lc = a.label("Lpchk")
        ld = a.label("Lpdone")
        a("s_mov_b32 %s, 0" % S_CNT)
        a("s_waitcnt vmcnt(%d)" % first_wait)
        a("s_branch %s" % lc)
        a("%s:" % lp)
        loads()
        a("s_waitcnt vmcnt(0)")
        a("%s:" % lc)
        check()
        if mode == "tag":
            a("v_and_b32 v%d, 0xff, v%d" % (acc, acc))
            a("v_cmp_ne_u32 %s, 0, v%d" % (S_CMP, acc))
        else:
            a("v_cmp_eq_u32 %s, -1, v%d" % (S_CMP, acc))
        a("s_add_u32 %s, %s, 1" % (S_CNT, S_CNT))
        a("s_cmp_eq_u64 %s, 0" % S_CMP)
        a("s_cbranch_scc1 %s" % ld)
        if self.o.get("sleep"):
            a("s_sleep %d" % self.o["sleep"])
        a("s_cmp_lt_u32 %s, %d" % (S_CNT, mk.LIMIT))
        a("s_cbranch_scc1 %s" % lp)
        a("v_mov_b32 v%d, %d" % (acc, 4 * code))
        a("v_mov_b32 v2, s2")
        a("v_add_u32 v2, 0x10000, v2")
        a("global_store_dword v%d, v2, %s" % (acc, P_DBG))
        a("%s:" % ld)

    def ws2(self):
        a = self.a
        a("s_add_u32 s96, s34, 0x%x" % DUP)
        a("s_addc_u32 s97, s35, 0")

    def polld(self, code, loads, check, acc, mode, issued=False):
        a = self.a
        lp = a.label("Lpoll")
        lc = a.label("Lpchk")
        ld = a.label("Lpdone")
        a("s_mov_b32 %s, 0" % S_CNT)
        if issued:
            a("s_waitcnt vmcnt(0)")
            a("s_branch %s" % lc)
        a("%s:" % lp)
        a("s_and_b32 %s, %s, 3" % (S_A, S_CNT))
        a("s_cmp_eq_u32 %s, 3" % S_A)
        a("s_cselect_b64 %s, %s, %s" % (S_SEL, P_WS2, P_WS))
        loads(S_SEL)
        a("s_waitcnt vmcnt(0)")
        a("%s:" % lc)
        check()
        if mode == "tag":
            a("v_and_b32 v%d, 0xff, v%d" % (acc, acc))
            a("v_cmp_ne_u32 %s, 0, v%d" % (S_CMP, acc))
        else:
            a("v_cmp_eq_u32 %s, -1, v%d" % (S_CMP, acc))
        a("s_add_u32 %s, %s, 1" % (S_CNT, S_CNT))
        a("s_cmp_eq_u64 %s, 0" % S_CMP)
        a("s_cbranch_scc1 %s" % ld)
        if self.o.get("sleep"):
            a("s_sleep %d" % self.o["sleep"])
        a("s_cmp_lt_u32 %s, %d" % (S_CNT, mk.LIMIT))
        a("s_cbranch_scc1 %s" % lp)
        a("v_mov_b32 v%d, %d" % (acc, 4 * code))
        a("v_mov_b32 v2, s2")
        a("v_add_u32 v2, 0x10000, v2")
        a("global_store_dword v%d, v2, %s" % (acc, P_DBG))
        a("%s:" % ld)

    def build(self):
        a = self.a
        self.stamp(0)
        a("s_cmp_ge_u32 s2, 256")
        a("s_cbranch_scc1 L_end")
        a("s_load_dwordx16 s[8:23], s[0:1], 0")
        a("s_load_dwordx8 s[24:31], s[0:1], 64")
        a("s_load_dwordx4 s[32:35], s[0:1], 96")
        a("v_and_b32 v1, 63, v0")
        a("v_lshrrev_b32 v2, 6, v0")
        a("v_and_b32 v3, 15, v1")
        a("v_readfirstlane_b32 s3, v2")
        a("v_lshrrev_b32 v4, 4, v1")
        a("s_and_b32 s4, s2, 7")
        a("s_lshr_b32 s5, s2, 3")
        a("s_mov_b32 %s, 0x05040100" % S_SELLO)
        a("s_mov_b32 %s, 0x07060302" % S_SELHI)
        a("s_mov_b32 %s, 0xff" % S_FF)
        a("v_lshlrev_b32 v118, 4, v1")
        a("v_mov_b32 v119, 0")
        a("s_cmp_ge_u32 s5, 16")
        a("s_cbranch_scc1 L_bc")
        self.ad()
        a("L_bc:")
        self.bc()
        a("L_end:")
        a("s_endpgm")
        a("L_code_end:")

    def ad(self):
        a = self.a
        nt = self.nt
        a("s_lshr_b32 s7, s5, 3")
        a("s_lshl_b32 s6, s4, 1")
        a("s_add_u32 s6, s6, s7")
        a("s_and_b32 s7, s5, 7")
        a("s_cmp_ge_u32 s3, 8")
        a("s_cbranch_scc1 L_ad_hi")
        a("s_and_b32 %s, s3, 3" % S_DB)
        a("s_lshr_b32 %s, s3, 2" % S_CB)
        a("s_lshl_b32 %s, s6, 9" % S_D)
        a("s_lshl_b32 %s, %s, 7" % (S_B, S_DB))
        a("s_add_u32 %s, %s, %s" % (S_D, S_D, S_B))
        a("s_lshl_b32 %s, s7, 1" % S_C2)
        a("s_add_u32 %s, %s, %s" % (S_C2, S_C2, S_CB))
        a("s_mul_i32 %s, %s, 56" % (S_A, S_C2))
        a("v_lshlrev_b32 v6, 4, v4")
        a("v_add_u32 v6, %s, v6" % S_A)
        for r in list(range(8, 12)) + [14, 15] + list(range(24, 32)):
            a("v_mov_b32 v%d, 0" % r)
        a("s_mul_i32 %s, %s, %d" % (S_A, S_C2, 28 * 8192))
        a("s_add_u32 %s, %s, %s" % (S_A, S_A, S_D))
        a("v_lshlrev_b32 v7, 16, v4")
        a("v_lshl_add_u32 v7, v3, 3, v7")
        a("v_add_u32 v7, %s, v7" % S_A)
        for i in range(4):
            a("v_mov_b32 v%d, -1" % (68 + i))
        a("s_lshl_b32 %s, s7, 3" % S_A)
        a("s_add_u32 %s, %s, s3" % (S_A, S_A))
        a("s_lshl_b32 s49, s6, 6")
        a("s_add_u32 s49, s49, %s" % S_A)
        a("s_mul_i32 %s, s49, 288" % S_B)
        a("s_add_u32 %s, %s, 0x%x" % (S_A, S_B, WS_P - 288))
        a("v_add_u32 v5, %s, v118" % S_A)
        a("s_add_u32 %s, %s, 0x%x" % (S_A, S_B, WS_E4))
        a("s_mov_b64 exec, 0x3ffff")
        a("v_add_u32 v5, %s, v118" % S_A)
        a("s_lshr_b32 %s, s3, 1" % S_A)
        a("s_lshl_b32 %s, s7, 2" % S_B)
        a("s_add_u32 %s, %s, %s" % (S_A, S_A, S_B))
        a("s_lshl_b32 %s, %s, 10" % (S_A, S_A))
        a("s_lshl_b32 %s, s6, 6" % S_B)
        a("s_add_u32 %s, %s, %s" % (S_A, S_A, S_B))
        a("s_and_b32 %s, s3, 1" % S_B)
        a("s_lshl_b32 %s, %s, 5" % (S_B, S_B))
        a("s_add_u32 %s, %s, %s" % (S_A, S_A, S_B))
        a("s_add_u32 %s, %s, 0x%x" % (S_A, S_A, WS_E2 - 36 * 16))
        self.setex(0, 0x30, (58, 59))
        a("s_mov_b64 exec, s[58:59]")
        a("v_add_u32 v5, %s, v118" % S_A)
        a("s_mov_b64 exec, -1")
        self.setex(0xffffffff, 0x3f, (58, 59))
        self.setex(0xffffffff, 0x00ffffff)
        a("s_waitcnt lgkmcnt(0)")
        self.stamp(1)
        a("s_load_dword %s, s[34:35], 0" % S_T)
        a("s_mov_b64 exec, %s" % S_EX)
        a("global_load_dwordx4 v[8:11], v118, %s" % P_X)
        a("s_mov_b64 exec, s[58:59]")
        a("global_store_dwordx4 v5, v[68:71], %s sc1" % P_WS)
        self.ws2()
        self.setex(0xfffc0000, 0xf, (58, 59))
        a("s_mov_b64 exec, s[58:59]")
        a("global_store_dwordx4 v5, v[68:71], %s sc1" % P_WS2)
        a("s_mov_b64 exec, -1")
        self.setex(0xffffffff, 0x0000ffff, (58, 59))
        a("global_load_dwordx2 v[12:13], v6, %s" % P_X)
        for j in range(4):
            if j:
                a("v_add_u32 v7, 8192, v7")
            a("global_load_dwordx2 %s, v7, %s %s" % (q(16 + 2 * j, 2), P_WQ, nt))
        a("s_mov_b64 exec, s[58:59]")
        a("global_load_dwordx2 v[14:15], v6, %s offset:8" % P_X)
        for j in range(4, 8):
            a("v_add_u32 v7, 8192, v7")
            a("global_load_dwordx2 %s, v7, %s %s" % (q(16 + 2 * j, 2), P_WQ, nt))
        a("s_mov_b64 exec, -1")
        a("s_barrier")
        a("s_lshl_b32 %s, s6, 14" % S_A)
        a("s_lshl_b32 %s, %s, 12" % (S_B, S_DB))
        a("s_add_u32 %s, %s, %s" % (S_A, S_A, S_B))
        a("s_lshl_b32 %s, %s, 6" % (S_B, S_C2))
        a("s_add_u32 %s, %s, %s" % (S_A, S_A, S_B))
        a("s_add_u32 %s, %s, 0x%x" % (S_A, S_A, WS_E1))
        a("v_lshrrev_b32 v5, 3, v3")
        a("v_lshlrev_b32 v5, 11, v5")
        a("v_and_b32 v6, 1, v3")
        a("v_lshl_add_u32 v5, v6, 10, v5")
        a("v_bfe_u32 v6, v3, 1, 2")
        a("v_lshl_add_u32 v5, v6, 4, v5")
        a("v_add_u32 v5, %s, v5" % S_A)
        a("s_waitcnt lgkmcnt(0)")
        self.tags_from_sgpr()
        a("s_waitcnt vmcnt(12)")
        self.stamp(2)
        self.ln_stats(8)
        a("s_waitcnt vmcnt(4)")
        for i in range(4):
            self.unpack(12 + i, 72 + 2 * i, 73 + 2 * i)
        self.xnorm(list(range(72, 80)), 80, 81)
        for i in range(4):
            a("v_cvt_pk_bf16_f32 v%d, v%d, v%d" % (88 + i, 72 + 2 * i, 73 + 2 * i))
        a("s_waitcnt vmcnt(0)")
        self.stamp(3)
        self.perm_frags(16, 72)
        self.nop(1)
        for e in range(4):
            a("v_mfma_f32_16x16x32_bf16 %s, %s, %s, 0" % (q(92 + 4 * e), q(88), q(72 + 4 * e)))
        self.nop(7)
        self.tag_quad(108, [92, 96, 100, 104], TB)
        a("s_mov_b64 exec, 0xffff")
        a("global_store_dwordx4 v5, v[108:111], %s %s" % (P_WS, self.o.get("e1st", "")))
        a("global_store_dwordx4 v5, v[108:111], %s sc1" % P_WS2)
        a("s_mov_b64 exec, -1")
        self.stamp(4)
        a("s_lshl_b32 %s, s6, 7" % S_A)
        a("s_lshl_b32 %s, s7, 2" % S_B)
        a("s_add_u32 %s, %s, %s" % (S_A, S_A, S_B))
        a("s_add_u32 %s, %s, 0x%x" % (S_A, S_A, WS_F0))
        a("v_mov_b32 v114, %s" % S_A)
        a("v_mov_b32 v115, %s" % S_T)
        a("s_barrier")
        a("s_cmp_lg_u32 s3, 0")
        a("s_cbranch_scc1 L_ad_b0")
        a("s_mov_b64 exec, 1")
        a("global_store_dword v114, v115, %s sc1" % P_WS)
        a("s_mov_b64 exec, -1")
        a("s_branch L_ad_b0")
        a("L_ad_hi:")
        a("s_sub_u32 %s, s3, 8" % S_W)
        a("s_lshl_b32 %s, s7, 20" % S_A)
        a("s_lshl_b32 %s, %s, 17" % (S_B, S_W))
        a("s_add_u32 %s, %s, %s" % (S_A, S_A, S_B))
        a("s_lshl_b32 %s, s6, 9" % S_B)
        a("s_add_u32 %s, %s, %s" % (S_A, S_A, S_B))
        a("v_and_b32 v5, 7, v3")
        a("v_lshlrev_b32 v5, 13, v5")
        a("v_lshrrev_b32 v6, 3, v3")
        a("v_lshl_add_u32 v5, v6, 6, v5")
        a("v_lshl_add_u32 v5, v4, 4, v5")
        a("v_add_u32 v5, %s, v5" % S_A)
        a("v_add_u32 v6, %d, v5" % (8 * 8192))
        a("s_lshr_b32 %s, %s, 1" % (S_A, S_W))
        a("s_lshl_b32 %s, s7, 2" % S_B)
        a("s_add_u32 %s, %s, %s" % (S_A, S_A, S_B))
        a("s_lshl_b32 %s, %s, 10" % (S_A, S_A))
        a("s_lshl_b32 %s, s6, 6" % S_B)
        a("s_add_u32 %s, %s, %s" % (S_A, S_A, S_B))
        a("s_and_b32 %s, %s, 1" % (S_B, S_W))
        a("s_lshl_b32 %s, %s, 5" % (S_B, S_B))
        a("s_add_u32 %s, %s, %s" % (S_A, S_A, S_B))
        a("s_add_u32 %s, %s, 0x%x" % (S_A, S_A, WS_E2))
        a("v_lshlrev_b32 v119, 1, v3")
        a("v_add_u32 v119, %s, v119" % S_A)
        a("s_waitcnt lgkmcnt(0)")
        a("s_load_dword %s, s[34:35], 0" % S_T)
        a("s_barrier")
        for h8 in range(2):
            for ln in range(4):
                a("global_load_dwordx4 %s, v%d, %s offset:%d %s" % (q(36 + 8 * ln + 4 * h8), 5 + h8, P_WUK, ln * 128, nt))
        if self.o.get("touch", 1):
            a("s_cmp_lg_u32 s3, 15")
            a("s_cbranch_scc1 L_ad_notouch")
            a("s_lshr_b32 %s, s7, 2" % S_A)
            a("s_lshl_b32 %s, %s, 22" % (S_A, S_A))
            a("v_and_b32 v7, 3, v1")
            a("v_lshlrev_b32 v7, 20, v7")
            a("v_add_u32 v7, %s, v7" % S_A)
            a("s_mov_b64 exec, 0xf")
            a("global_load_dword v8, v7, %s" % P_WUV)
            a("s_lshl_b32 %s, s6, 8" % S_A)
            a("s_and_b32 %s, s7, 3" % S_B)
            a("s_lshl_b32 %s, %s, 6" % (S_B, S_B))
            a("s_add_u32 %s, %s, %s" % (S_A, S_A, S_B))
            a("s_mul_i32 %s, %s, 896" % (S_A, S_A))
            a("v_and_b32 v7, 1, v1")
            a("v_mul_u32_u24 v7, %d, v7" % (63 * 896))
            a("v_add_u32 v7, %s, v7" % S_A)
            a("global_load_dword v9, v7, %s" % P_WO)
            a("s_mov_b64 exec, -1")
            a("L_ad_notouch:")
        a("s_waitcnt lgkmcnt(0)")
        self.tags_from_sgpr()
        self.ws2()
        a("s_barrier")
        a("s_waitcnt vmcnt(%d)" % self.o.get("b0wait", 0))
        a("L_ad_b0:")
        a("s_lshl_b32 %s, s6, 14" % S_A)
        a("s_lshl_b32 %s, s3, 10" % S_B)
        a("s_add_u32 %s, %s, %s" % (S_A, S_A, S_B))
        a("s_add_u32 %s, %s, 0x%x" % (S_A, S_A, WS_E1))
        a("v_lshlrev_b32 v116, 6, v3")
        a("v_lshl_add_u32 v116, v4, 4, v116")
        a("v_add_u32 v116, %s, v116" % S_A)
        a("s_lshr_b32 %s, s3, 1" % S_A)
        a("s_lshl_b32 %s, %s, 10" % (S_A, S_A))
        a("s_and_b32 %s, s3, 1" % S_B)
        a("s_lshl_b32 %s, %s, 3" % (S_B, S_B))
        a("s_add_u32 %s, %s, %s" % (S_A, S_A, S_B))
        a("v_add_u32 v117, %s, v118" % S_A)
        a("s_barrier")
        self.stamp(5)
        a("global_load_dwordx4 v[72:75], v116, %s sc1" % P_WS)
        a("s_cmp_lt_u32 s3, 8")
        a("s_cbranch_scc1 L_ad_s2")
        a("s_waitcnt vmcnt(1)")
        for ln in range(4):
            self.swap8(36 + 8 * ln, 40 + 8 * ln, 108)
        a("L_ad_s2:")
        self.polld(1, lambda b: a("global_load_dwordx4 v[72:75], v116, %s sc1" % b),
                   lambda: self.check_tags([72], 112, TB), 112, "tag", issued=True)
        self.stamp(6)
        a("v_cvt_pk_bf16_f32 v76, v72, v73")
        a("v_cvt_pk_bf16_f32 v77, v74, v75")
        a("ds_write_b64 v117, v[76:77] offset:%d" % L_AQ)
        self.barrier()
        self.stamp(7)
        a("s_and_b32 %s, s7, 3" % S_DB)
        a("s_lshr_b32 %s, s7, 2" % S_CB)
        a("s_cmp_lt_u32 s3, 8")
        a("s_cbranch_scc1 L_ad_dlo")
        for ts in range(8):
            a("ds_read_b128 %s, v118 offset:%d" % (q(72 + 4 * ts), L_AQ + ts * 1024))
        for ts in range(8):
            a("s_waitcnt lgkmcnt(%d)" % (7 - ts))
            acc = 104 + 4 * (ts & 1)
            a("v_mfma_f32_16x16x32_bf16 %s, %s, %s, %s" % (q(acc), q(72 + 4 * ts), q(36 + 4 * ts), "0" if ts < 2 else q(acc)))
        self.nop(6)
        a("v_add_f32 v104, v104, v105")
        a("v_add_f32 v106, v106, v107")
        a("v_add_f32 v108, v108, v109")
        a("v_add_f32 v110, v110, v111")
        a("v_add_f32 v104, v104, v106")
        a("v_add_f32 v108, v108, v110")
        a("v_add_f32 v104, v104, v108")
        self.xswap_allreduce("v_add_f32", 104, 105, 32)
        self.xswap_allreduce("v_add_f32", 104, 105, 16)
        self.nop(1)
        a("v_mov_b32_dpp v105, v104 quad_perm:[1,1,3,3] row_mask:0xf bank_mask:0xf")
        a("v_cvt_pk_bf16_f32 v104, v104, v105")
        a("v_min_u32 v104, 0xfffffffe, v104")
        a("s_mov_b64 exec, 0x5555")
        a("global_store_dword v119, v104, %s sc1" % P_WS)
        a("s_mov_b64 exec, -1")
        self.stamp(8)
        a("s_barrier")
        self.stamp(9)
        a("s_cmp_ge_u32 s3, 15")
        a("s_cbranch_scc1 L_ad_end")
        a("s_lshl_b32 %s, s6, 8" % S_A)
        a("s_lshl_b32 %s, %s, 6" % (S_B, S_DB))
        a("s_add_u32 %s, %s, %s" % (S_A, S_A, S_B))
        a("s_mul_i32 %s, %s, 896" % (S_A, S_A))
        a("s_lshl_b32 %s, %s, 7" % (S_B, S_W))
        a("s_add_u32 %s, %s, %s" % (S_A, S_A, S_B))
        a("v_lshrrev_b32 v5, 3, v3")
        a("v_lshl_add_u32 v5, v5, 2, v4")
        a("v_mul_u32_u24 v5, %d, v5" % (8 * 896))
        a("v_and_b32 v6, 7, v3")
        a("v_lshl_add_u32 v5, v6, 4, v5")
        a("v_add_u32 v5, %s, v5" % S_A)
        a("v_add_u32 v6, %d, v5" % (4 * 896))
        for j in range(8):
            a("global_load_dwordx4 %s, v%d, %s offset:%d %s" % (q(8 + 4 * j), 5 + (j >> 2), P_WO, (j & 3) * 896, self.o.get("wopol", nt)))
        a("v_and_b32 v6, 7, v3")
        a("v_mul_u32_u24 v6, 144, v6")
        a("v_lshl_add_u32 v6, v4, 4, v6")
        a("s_lshl_b32 %s, s4, 4" % S_A)
        a("s_add_u32 %s, %s, s5" % (S_A, S_A))
        a("s_mul_i32 %s, %s, 1792" % (S_A, S_A))
        a("s_lshl_b32 %s, %s, 8" % (S_B, S_W))
        a("s_add_u32 %s, %s, %s" % (S_A, S_A, S_B))
        a("s_add_u32 %s, %s, 0x%x" % (S_A, S_A, WS_S6))
        a("v_and_b32 v100, 7, v3")
        a("v_lshlrev_b32 v100, 3, v100")
        a("v_lshrrev_b32 v101, 3, v3")
        a("v_lshl_add_u32 v100, v101, 2, v100")
        a("v_add_u32 v100, v100, v4")
        a("v_lshlrev_b32 v100, 2, v100")
        a("v_add_u32 v100, %s, v100" % S_A)
        a("v_lshlrev_b32 v101, 3, v4")
        a("v_lshrrev_b32 v101, v101, %s" % S_T)
        self.setex(0, 0xffffffff)
        a("s_waitcnt vmcnt(0)")
        self.stamp(10)
        self.tr_frags(8, 40, 108)
        a("s_barrier")
        self.stamp(11)
        a("s_barrier")
        self.stamp(14)
        a("ds_read_b128 v[72:75], v6 offset:%d" % L_X5)
        a("ds_read_b128 v[76:79], v6 offset:%d" % (L_X5 + 64))
        a("s_waitcnt lgkmcnt(1)")
        for e in range(4):
            a("v_mfma_f32_16x16x32_bf16 %s, %s, %s, 0" % (q(80 + 4 * e), q(72), q(40 + 4 * e)))
        a("s_waitcnt lgkmcnt(0)")
        for e in range(4):
            a("v_mfma_f32_16x16x32_bf16 %s, %s, %s, %s" % (q(80 + 4 * e), q(76), q(56 + 4 * e), q(80 + 4 * e)))
        self.nop(4)
        for e in range(4):
            d = 80 + 4 * e
            a("v_add_f32 v%d, v%d, v%d" % (d, d, d + 1))
            a("v_add_f32 v%d, v%d, v%d" % (d + 2, d + 2, d + 3))
            a("v_add_f32 v%d, v%d, v%d" % (d, d, d + 2))
        self.nop(1)
        a("v_permlane16_swap_b32 v80, v84")
        a("v_permlane16_swap_b32 v88, v92")
        self.nop(0)
        a("v_add_f32 v80, v80, v84")
        a("v_add_f32 v88, v88, v92")
        a("v_cndmask_b32 v80, v80, v88, %s" % S_EX)
        a("v_bfi_b32 v80, %s, v101, v80" % S_FF)
        a("global_store_dword v100, v80, %s sc1" % P_WS)
        a("s_branch L_ad_end")
        a("L_ad_dlo:")
        a("s_lshl_b32 %s, %s, 3" % (S_C2, S_CB))
        a("s_add_u32 %s, %s, s3" % (S_C2, S_C2))
        a("s_lshl_b32 %s, %s, 19" % (S_A, S_C2))
        a("s_lshl_b32 %s, s6, 9" % S_B)
        a("s_add_u32 %s, %s, %s" % (S_A, S_A, S_B))
        a("s_lshl_b32 %s, %s, 7" % (S_B, S_DB))
        a("s_add_u32 %s, %s, %s" % (S_A, S_A, S_B))
        a("v_and_b32 v7, 1, v4")
        a("v_lshlrev_b32 v7, 2, v7")
        a("v_lshrrev_b32 v6, 1, v4")
        a("v_add_u32 v7, v7, v6")
        a("v_lshrrev_b32 v6, 3, v3")
        a("v_lshl_add_u32 v7, v6, 1, v7")
        a("v_lshlrev_b32 v7, 13, v7")
        a("v_and_b32 v6, 7, v3")
        a("v_lshl_add_u32 v7, v6, 4, v7")
        a("v_add_u32 v7, %s, v7" % S_A)
        a("s_lshl_b32 %s, s6, 4" % S_A)
        a("s_add_u32 %s, %s, %s" % (S_A, S_A, S_C2))
        a("s_mul_i32 %s, %s, %d" % (S_A, S_A, 8 * RST))
        a("s_add_u32 %s, %s, 0x%x" % (S_A, S_A, WS_E4))
        a("v_mul_u32_u24 v101, %d, v3" % RST)
        a("v_lshl_add_u32 v101, v4, 4, v101")
        a("v_add_u32 v101, %s, v101" % S_A)
        a("v_and_b32 v102, 1, v4")
        a("v_and_b32 v6, 3, v3")
        a("v_lshl_add_u32 v102, v102, 2, v6")
        a("v_mul_u32_u24 v102, %d, v102" % RST)
        a("v_add_u32 v102, %s, v102" % S_A)
        for i in range(8):
            a("v_mov_b32 v%d, 0" % (72 + i))
        self.setex(0x00ff00ff, 0x00ff00ff)
        a("s_mul_i32 %s, s3, 144" % S_A)
        a("v_and_b32 v5, 7, v3")
        a("v_lshlrev_b32 v5, 3, v5")
        a("v_lshrrev_b32 v6, 3, v3")
        a("v_lshl_add_u32 v5, v6, 2, v5")
        a("v_add_u32 v5, v5, v4")
        a("v_lshlrev_b32 v5, 1, v5")
        a("v_add_u32 v5, %s, v5" % S_A)
        a("s_barrier")
        self.stamp(9)
        for jj in range(8):
            if jj:
                a("v_add_u32 v7, %d, v7" % (8 * 8192))
            a("global_load_dwordx4 %s, v7, %s %s" % (q(8 + 4 * jj), P_WUV, nt))
        a("s_waitcnt vmcnt(0)")
        self.stamp(10)
        self.tr_frags(8, 40, 108)
        a("s_barrier")
        self.stamp(11)

        def lde():
            a("global_load_dwordx2 v[8:9], v102, %s offset:128 sc1" % P_WS)
            a("s_mov_b64 exec, %s" % S_EX)
            a("global_load_dwordx4 v[72:75], v101, %s sc1" % P_WS)
            a("global_load_dwordx4 v[76:79], v101, %s offset:64 sc1" % P_WS)
            a("s_mov_b64 exec, -1")
        self.poll(5, lde, lambda: self.check_sent([8, 9] + list(range(72, 80)), 112), 112, "sent")
        self.stamp(13)
        a("v_mov_b32 v10, v8")
        for e in range(4):
            a("v_mfma_f32_16x16x32_bf16 %s, %s, %s, 0" % (q(80 + 4 * e), q(72), q(40 + 4 * e)))
        self.quad_allreduce("v_max_f32", [10])
        for e in range(4):
            a("v_mfma_f32_16x16x32_bf16 %s, %s, %s, %s" % (q(80 + 4 * e), q(76), q(56 + 4 * e), q(80 + 4 * e)))
        self.xswap_allreduce("v_max_f32", 10, 11, 16)
        a("v_sub_f32 v8, v8, v10")
        a("v_exp_f32 v8, v8")
        self.nop(0)
        a("v_mul_f32 v9, v8, v9")
        self.nop(0)
        for e in range(4):
            d = 80 + 4 * e
            a("v_mul_f32_dpp v%d, v8, v%d row_newbcast:0 row_mask:0xf bank_mask:0xf" % (d, d))
        a("v_add_f32_dpp v9, v9, v9 quad_perm:[1,0,3,2] row_mask:0xf bank_mask:0xf")
        for e in range(4):
            d = 80 + 4 * e
            a("v_fmac_f32_dpp v%d, v8, v%d row_newbcast:1 row_mask:0xf bank_mask:0xf" % (d, d + 1))
        a("v_add_f32_dpp v9, v9, v9 quad_perm:[2,3,0,1] row_mask:0xf bank_mask:0xf")
        for e in range(4):
            d = 80 + 4 * e
            a("v_fmac_f32_dpp v%d, v8, v%d row_newbcast:2 row_mask:0xf bank_mask:0xf" % (d, d + 2))
        a("v_mov_b32 v11, v9")
        for e in range(4):
            d = 80 + 4 * e
            a("v_fmac_f32_dpp v%d, v8, v%d row_newbcast:3 row_mask:0xf bank_mask:0xf" % (d, d + 3))
        a("v_permlane16_swap_b32 v9, v11")
        self.nop(0)
        a("v_add_f32 v9, v9, v11")
        a("v_rcp_f32 v9, v9")
        self.swap_reduce4(80, 84, 88, 92)
        a("v_mul_f32 v80, v80, v9")
        a("v_cvt_pk_bf16_f32 v80, v80, v80")
        a("ds_write_b16 v5, v80 offset:%d" % L_X5)
        self.barrier()
        self.stamp(14)
        a("L_ad_end:")
        self.stamp(15)
        self.dump_stamps(16)
        a("s_endpgm")

    def mlp_loads(self):
        a = self.a
        l1 = a.label("L_nomlp")
        l2 = a.label("L_now1")
        a("s_cmp_ge_u32 s7, 14")
        a("s_cbranch_scc1 %s" % l1)
        a("s_cmp_ge_u32 s3, 14")
        a("s_cbranch_scc1 %s" % l2)
        a("s_lshl_b32 %s, s3, 5" % S_A)
        a("v_lshrrev_b32 v0, 1, v1")
        a("v_add_u32 v0, %s, v0" % S_A)
        a("v_mul_u32_u24 v0, 3584, v0")
        a("v_and_b32 v2, 1, v1")
        a("v_lshl_add_u32 v0, v2, 4, v0")
        a("s_lshl_b32 %s, %s, 5" % (S_A, S_RP))
        a("v_add_u32 v0, %s, v0" % S_A)
        a("s_lshl_b32 %s, s3, 10" % S_A)
        a("s_add_u32 %s, %s, 0x%x" % (S_A, S_A, L_W1))
        a("s_mov_b32 m0, %s" % S_A)
        self.nop(0)
        a("global_load_lds_dwordx4 v0, %s %s" % (P_W1, self.o.get("w1pol", "")))
        a("%s:" % l2)
        a("s_lshl_b32 %s, %s, 4" % (S_A, S_RP))
        a("s_add_u32 %s, %s, s3" % (S_A, S_A))
        a("s_mul_i32 %s, %s, 896" % (S_A, S_A))
        a("v_add_u32 v0, %s, v118" % S_A)
        a("s_lshl_b32 %s, s3, 10" % S_A)
        a("s_add_u32 %s, %s, 0x%x" % (S_A, S_A, L_W2))
        a("s_mov_b32 m0, %s" % S_A)
        self.setex(0xffffffff, 0x00ffffff, (58, 59))
        a("s_mov_b64 exec, s[58:59]")
        a("global_load_lds_dwordx4 v0, %s %s" % (P_W2, self.nt))
        a("s_mov_b64 exec, -1")
        a("%s:" % l1)

    def code_warm(self):
        a = self.a
        a("s_getpc_b64 s[56:57]")
        a("L_pc_%d:" % len(a.lines))
        lab = a.lines[-1][:-1]
        a("s_sub_u32 s56, s56, %s-%s_kernel" % (lab, NAME))
        a("s_subb_u32 s57, s57, 0")
        a("s_and_b32 %s, s5, 15" % S_A)
        a("s_lshl_b32 %s, %s, 10" % (S_A, S_A))
        a("v_add_u32 v126, %s, v118" % S_A)
        a("v_min_u32 v126, L_code_end-%s_kernel-16, v126" % NAME)
        a("global_load_dwordx4 v[112:115], v126, s[56:57]")

    def bc(self):
        a = self.a
        nt = self.nt
        rowpol = self.o.get("rowpol", nt)
        colpol = self.o.get("colpol", nt)
        a("s_sub_u32 s7, s5, 16")
        a("s_lshl_b32 %s, s4, 4" % S_C2)
        a("s_add_u32 %s, %s, s7" % (S_C2, S_C2))
        a("s_lshl_b32 %s, %s, 17" % (S_A, S_C2))
        a("s_lshl_b32 %s, s3, 7" % S_B)
        a("s_add_u32 %s, %s, %s" % (S_A, S_A, S_B))
        a("v_and_b32 v5, 7, v3")
        a("v_lshlrev_b32 v5, 11, v5")
        a("v_lshrrev_b32 v6, 3, v3")
        a("v_lshl_add_u32 v5, v6, 6, v5")
        a("v_lshl_add_u32 v5, v4, 4, v5")
        a("v_add_u32 v116, %s, v5" % S_A)
        for i in range(4):
            a("v_mov_b32 v%d, 0" % (104 + i))
        self.setex(0xffffffff, 0x00ffffff)
        a("s_waitcnt lgkmcnt(0)")
        self.stamp(1)
        a("s_load_dword %s, s[34:35], 0" % S_T)
        a("s_cmp_lg_u32 s3, 0")
        a("s_cbranch_scc1 L_bc_rows")
        a("s_mov_b64 exec, %s" % S_EX)
        a("global_load_dwordx4 v[104:107], v118, %s" % P_X)
        a("s_mov_b64 exec, -1")
        a("L_bc_rows:")
        if self.o.get("warm", 1):
            a("s_cmp_lg_u32 s3, 1")
            a("s_cbranch_scc1 L_bc_nowarm")
            self.code_warm()
            a("L_bc_nowarm:")
        if self.o.get("touch", 1):
            a("s_cmp_lg_u32 s3, 2")
            a("s_cbranch_scc1 L_bc_notouch")
            a("v_mov_b32 v126, 0")
            a("s_mov_b64 exec, 1")
            for k, p in enumerate((P_W1, P_W2, P_B2, P_OUT, P_WS)):
                a("global_load_dword v%d, v126, %s" % (72 + k, p))
            a("s_mov_b64 exec, -1")
            a("L_bc_notouch:")
        for rg in range(8):
            if rg:
                a("v_add_u32 v116, %d, v116" % (8 * 2048))
            a("global_load_dwordx4 %s, v116, %s %s" % (q(8 + 4 * rg), P_C, rowpol))
        a("s_lshl_b32 %s, s4, 4" % S_D)
        a("s_add_u32 %s, %s, s3" % (S_D, S_D))
        a("s_lshl_b32 %s, %s, 17" % (S_A, S_D))
        a("s_lshl_b32 %s, s7, 7" % S_B)
        a("s_add_u32 %s, %s, %s" % (S_A, S_A, S_B))
        a("v_lshl_add_u32 v7, v6, 2, v4")
        a("v_lshlrev_b32 v7, 14, v7")
        a("v_and_b32 v6, 7, v3")
        a("v_lshl_add_u32 v7, v6, 4, v7")
        a("v_add_u32 v108, %s, v7" % S_A)
        a("s_lshl_b32 %s, s3, 11" % S_A)
        a("s_add_u32 %s, %s, 0x%x" % (S_A, S_A, WS_E2))
        a("v_lshlrev_b32 v5, 6, v3")
        a("v_lshl_add_u32 v5, v4, 4, v5")
        a("v_add_u32 v5, %s, v5" % S_A)
        a("s_lshr_b32 %s, s3, 1" % S_A)
        a("s_lshl_b32 %s, %s, 2" % (S_A, S_A))
        a("s_add_u32 %s, %s, 0x%x" % (S_A, S_A, WS_F0))
        a("v_lshlrev_b32 v6, 7, v3")
        a("v_add_u32 v6, %s, v6" % S_A)
        a("s_mul_i32 %s, s3, 4352" % S_A)
        a("v_mul_u32_u24 v116, 272, v3")
        a("v_lshl_add_u32 v116, v4, 4, v116")
        a("v_add_u32 v116, %s, v116" % S_A)
        a("s_mul_i32 %s, s3, 272" % S_A)
        a("v_lshlrev_b32 v117, 2, v1")
        a("v_add_u32 v117, %s, v117" % S_A)
        a("v_add_u32 v119, %d, v117" % (8 * 4352))
        a("v_lshrrev_b32 v124, 1, v1")
        a("v_lshlrev_b32 v124, 2, v124")
        a("s_movk_i32 %s, 128" % S_A)
        a("v_writelane_b32 v124, %s, 1" % S_A)
        a("s_movk_i32 %s, 132" % S_A)
        a("v_writelane_b32 v124, %s, 3" % S_A)
        a("s_mul_i32 %s, %s, %d" % (S_A, S_C2, PST))
        a("s_mul_i32 %s, s3, %d" % (S_B, RST))
        a("s_add_u32 %s, %s, %s" % (S_A, S_A, S_B))
        a("s_add_u32 %s, %s, 0x%x" % (S_A, S_A, WS_P))
        a("v_add_u32 v125, %s, v124" % S_A)
        a("s_lshl_b32 %s, s3, 4" % S_A)
        a("s_add_u32 %s, %s, s7" % (S_A, S_A))
        a("s_lshl_b32 %s, %s, 3" % (S_A, S_A))
        a("s_add_u32 %s, %s, s4" % (S_A, S_A))
        a("s_mul_i32 %s, %s, %d" % (S_A, S_A, RST))
        a("s_add_u32 %s, %s, 0x%x" % (S_A, S_A, WS_E4))
        a("v_add_u32 v124, %s, v124" % S_A)
        a("s_mul_i32 %s, %s, %d" % (S_A, S_D, PST))
        a("s_add_u32 %s, %s, 0x%x" % (S_A, S_A, WS_P))
        a("v_mul_u32_u24 v126, %d, v3" % RST)
        a("v_add_u32 v126, %s, v126" % S_A)
        a("v_lshl_add_u32 v7, v4, 4, v126")
        a("s_lshl_b32 %s, s3, 7" % S_A)
        a("v_lshlrev_b32 v110, 3, v3")
        a("v_add_u32 v110, %s, v110" % S_A)
        a("s_lshl_b32 %s, s3, 3" % S_A)
        a("v_lshlrev_b32 v111, 7, v3")
        a("v_add_u32 v111, %s, v111" % S_A)
        a("s_mul_i32 %s, s4, 14" % S_RP)
        a("s_add_u32 %s, %s, s7" % (S_RP, S_RP))
        a("s_min_u32 %s, %s, 111" % (S_A, S_RP))
        a("s_lshl_b32 %s, %s, 4" % (S_A, S_A))
        a("s_add_u32 %s, %s, s3" % (S_A, S_A))
        a("s_lshr_b32 %s, %s, 1" % (S_A, S_A))
        a("s_lshl_b32 %s, %s, 2" % (S_A, S_A))
        a("s_load_dword %s, %s, %s" % (S_B1, P_B1, S_A))
        self.ws2()
        a("s_waitcnt lgkmcnt(0)")
        self.tags_from_sgpr()
        a("s_cmp_lg_u32 s3, 0")
        a("s_cbranch_scc1 L_bc_noln")
        a("s_waitcnt vmcnt(8)")
        self.ln_stats(104)
        for i in range(4):
            self.unpack(104 + i, 72 + 2 * i, 73 + 2 * i)
        self.xnorm(list(range(72, 80)), 80, 81)
        for i in range(4):
            self.rb2(72 + 2 * i, 73 + 2 * i, 80)
        a("v_lshlrev_b32 v80, 5, v1")
        a("ds_write_b128 v80, v[72:75] offset:%d" % L_XN)
        a("ds_write_b128 v80, v[76:79] offset:%d" % (L_XN + 16))
        a("L_bc_noln:")
        self.setex(0x5555555f, 0x55555555)
        if self.o.get("colwait", 1):
            a("s_waitcnt vmcnt(0)")
            for kt in range(4):
                self.swap8(8 + 8 * kt, 12 + 8 * kt, 112)
        self.barrier()
        self.stamp(14)

        def ldf():
            a("s_mov_b64 exec, 0xffff")
            a("global_load_dword v109, v6, %s sc1" % P_WS)

        def ckf():
            a("v_cmp_ne_u32 vcc, %s, v109" % S_T)
            self.nop(1)
            a("v_cndmask_b32 v112, 0, -1, vcc")
        ldf()
        a("s_mov_b64 exec, -1")
        nm = 0
        if self.o.get("mlppos") == "precols":
            self.mlp_loads()
        for j2 in range(0, 8, 2):
            if j2:
                a("v_add_u32 v108, %d, v108" % (2 * 2048))
            for u in range(2):
                a("global_load_dwordx4 %s, v108, %s offset:%d %s" % (q(40 + 4 * (j2 + u)), P_C, u * 2048, colpol))
        self.stamp(15)
        if not self.o.get("colwait", 1):
            a("s_waitcnt vmcnt(9)")
            for kt in range(4):
                self.swap8(8 + 8 * kt, 12 + 8 * kt, 112)
        a("s_waitcnt vmcnt(%d)" % (8 + (0 if self.o.get("mlppos") == "precols" else 0)))
        if self.o.get("mlppos") == "postcols":
            self.mlp_loads()
        a("s_mov_b64 exec, 0xffff")
        a("v_cmp_ne_u32 %s, %s, v109" % (S_CMP, S_T))
        a("s_mov_b64 exec, -1")
        a("s_barrier")
        self.stamp(16)
        a("s_cmp_eq_u64 %s, 0" % S_CMP)
        a("s_cbranch_scc1 L_bc_fok")
        self.poll(2, ldf, ckf, 112, "sent")
        a("L_bc_fok:")
        self.stamp(2)

        def ldp():
            a("global_load_dwordx4 v[104:107], v5, %s sc1" % P_WS)
            a("global_load_dwordx4 v[112:115], v5, %s offset:1024 sc1" % P_WS)

        def ckp():
            self.check_sent([104, 105, 106, 107, 112, 113, 114, 115], 109)
        ldp()
        a("s_mov_b32 %s, 0" % S_OK)
        a("s_waitcnt vmcnt(0)")
        ckp()
        a("v_cmp_eq_u32 %s, -1, v109" % S_CMP)
        self.nop(0)
        a("s_cmp_eq_u64 %s, 0" % S_CMP)
        a("s_cbranch_scc1 L_bc_pok")
        self.tr_frags(40, 72, 112)
        a("s_mov_b32 %s, 1" % S_OK)
        self.poll(3, ldp, ckp, 109, "sent")
        a("L_bc_pok:")
        self.stamp(4)
        a("s_cmp_eq_u32 %s, 0" % S_OK)
        a("s_cbranch_scc1 L_bc_s3b")
        for variant, D in ((0, 40), (1, 72)):
            if variant == 1:
                a("L_bc_s3b:")
            for kt in range(4):
                a("v_mfma_f32_16x16x32_bf16 %s, %s, %s, 0" % (q(D + 4 * kt), q(8 + 8 * kt), q(104)))
            for kt in range(4):
                a("v_mfma_f32_16x16x32_bf16 %s, %s, %s, %s" % (q(D + 4 * kt), q(12 + 8 * kt), q(112), q(D + 4 * kt)))
            self.nop(4)
            for kt in range(4):
                a("ds_write_b128 v116, %s offset:%d" % (q(D + 4 * kt), L_SP + kt * 64))
            if variant == 0:
                a("s_branch L_bc_b3")
        a("L_bc_b3:")
        self.barrier()
        self.stamp(5)
        for k in range(16):
            a("ds_read_b32 v%d, v%d offset:%d" % (8 + k, 117 if k < 8 else 119, L_SP + (k & 7) * 4352))
        a("s_waitcnt lgkmcnt(8)")
        for st in (4, 2, 1):
            for k in range(st):
                a("v_add_f32 v%d, v%d, v%d" % (8 + k, 8 + k, 8 + st + k))
        a("s_waitcnt lgkmcnt(0)")
        for st in (4, 2, 1):
            for k in range(st):
                a("v_add_f32 v%d, v%d, v%d" % (16 + k, 16 + k, 16 + st + k))
        a("v_add_f32 v8, v8, v16")
        self.rb(8, 9)
        a("v_mul_f32 v8, 0x3db8aa3b, v8")
        a("v_mov_b32 v12, v8")
        self.row_allreduce("v_max_f32", [12])
        self.xswap_allreduce("v_max_f32", 12, 10, 16)
        self.xswap_allreduce("v_max_f32", 12, 10, 32)
        a("v_sub_f32 v8, v8, v12")
        a("v_exp_f32 v8, v8")
        self.nop(1)
        a("v_mov_b32_dpp v10, v8 quad_perm:[1,1,3,3] row_mask:0xf bank_mask:0xf")
        a("v_add_f32_dpp v13, v8, v8 row_ror:8 row_mask:0xf bank_mask:0xf")
        a("v_cvt_pk_bf16_f32 v10, v8, v10")
        self.row_allreduce("v_add_f32", [13], steps=(4, 2, 1))
        self.xswap_allreduce("v_add_f32", 13, 11, 16)
        self.xswap_allreduce("v_add_f32", 13, 11, 32)
        a("s_mov_b64 exec, 2")
        a("v_mov_b32 v10, v12")
        a("s_mov_b64 exec, 8")
        a("v_mov_b32 v10, v13")
        a("s_mov_b64 exec, %s" % S_EX)
        a("v_min_u32 v10, 0xfffffffe, v10")
        a("global_store_dword v125, v10, %s" % P_WS)
        self.stamp(6)
        a("s_barrier")
        a("global_store_dword v125, v10, %s sc1" % P_WS2)
        a("s_mov_b64 exec, -1")
        a("s_cmp_lg_u32 %s, 0" % S_OK)
        a("s_cbranch_scc1 L_bc_fr")
        self.tr_frags(40, 72, 112)
        a("L_bc_fr:")
        self.stamp(7)

        def ld3(b):
            a("global_load_dwordx2 v[48:49], v126, %s offset:128 sc1" % b)
            a("global_load_dwordx4 v[40:43], v7, %s sc1" % b)
            a("global_load_dwordx4 v[44:47], v7, %s offset:64 sc1" % b)
        self.polld(8, ld3, lambda: self.check_sent(range(40, 50), 112), 112, "sent")
        self.stamp(8)
        for e in range(4):
            a("v_mfma_f32_16x16x32_bf16 %s, %s, %s, 0" % (q(52 + 4 * e), q(72 + 4 * e), q(40)))
        for e in range(4):
            a("v_mfma_f32_16x16x32_bf16 %s, %s, %s, %s" % (q(52 + 4 * e), q(88 + 4 * e), q(44), q(52 + 4 * e)))
        a("ds_write_b64 v110, v[48:49] offset:%d" % L_ML)
        if self.o.get("mlppos") == "e3got":
            self.mlp_loads()
        else:
            self.nop(3)
        for e in range(4):
            a("ds_write_b128 v116, %s offset:%d" % (q(52 + 4 * e), L_SP + e * 64))
        self.barrier()
        self.stamp(9)
        a("ds_read_b64 v[24:25], v111 offset:%d" % L_ML)
        for k in range(8):
            a("ds_read_b32 v%d, v117 offset:%d" % (8 + k, L_SP + k * 4352))
        a("s_waitcnt lgkmcnt(8)")
        a("v_mov_b32 v26, v24")
        for k in range(8):
            a("ds_read_b32 v%d, v119 offset:%d" % (16 + k, L_SP + k * 4352))
        self.row_allreduce("v_max_f32", [26])
        a("v_sub_f32 v24, v24, v26")
        a("v_exp_f32 v24, v24")
        a("s_waitcnt lgkmcnt(8)")
        a("v_mul_f32 v27, v24, v25")
        a("v_mul_f32_dpp v28, v24, v8 row_newbcast:0 row_mask:0xf bank_mask:0xf")
        a("v_mul_f32_dpp v29, v24, v9 row_newbcast:1 row_mask:0xf bank_mask:0xf")
        sh = [8, 4, 2, 1]
        for k in range(2, 8):
            a("v_fmac_f32_dpp v%d, v24, v%d row_newbcast:%d row_mask:0xf bank_mask:0xf" % (28 + (k & 1), 8 + k, k))
            if k in (2, 5):
                a("v_add_f32_dpp v27, v27, v27 row_ror:%d row_mask:0xf bank_mask:0xf" % sh.pop(0))
        a("s_waitcnt lgkmcnt(0)")
        for k in range(8, 16):
            a("v_fmac_f32_dpp v%d, v24, v%d row_newbcast:%d row_mask:0xf bank_mask:0xf" % (28 + (k & 1), 8 + k, k))
            if k in (8, 11):
                a("v_add_f32_dpp v27, v27, v27 row_ror:%d row_mask:0xf bank_mask:0xf" % sh.pop(0))
        a("v_add_f32 v28, v28, v29")
        self.nop(1)
        a("v_mov_b32_dpp v29, v28 quad_perm:[1,1,3,3] row_mask:0xf bank_mask:0xf")
        a("v_cvt_pk_bf16_f32 v28, v28, v29")
        a("s_mov_b64 exec, 2")
        a("v_mov_b32 v28, v26")
        a("s_mov_b64 exec, 8")
        a("v_mov_b32 v28, v27")
        a("s_mov_b64 exec, %s" % S_EX)
        a("v_min_u32 v28, 0xfffffffe, v28")
        a("global_store_dword v124, v28, %s sc1" % P_WS)
        a("s_mov_b64 exec, -1")
        self.stamp(10)
        a("s_cmp_ge_u32 s7, 14")
        a("s_cbranch_scc1 L_bc_end")
        for i in range(4):
            a("v_mov_b32 v%d, 0" % (88 + i))
        self.setex(0xffffffff, 0x00ffffff)
        if self.o.get("mlppos", "end") == "end":
            a("s_barrier")
            self.mlp_loads()
        a("s_lshl_b32 %s, s3, 7" % S_A)
        a("v_lshrrev_b32 v31, 1, v1")
        a("v_lshlrev_b32 v31, 2, v31")
        a("v_add_u32 v31, %s, v31" % S_A)
        a("ds_read_b32 v100, v31 offset:%d" % L_XN)
        a("v_and_b32 v32, 1, v1")
        a("s_lshl_b32 %s, s3, 10" % S_A)
        a("s_add_u32 %s, %s, 0x%x" % (S_A, S_A, L_W1))
        a("v_add_u32 v30, %s, v118" % S_A)
        a("s_waitcnt vmcnt(0)")
        a("ds_read_b128 v[92:95], v30 offset:0x4000")
        a("s_cmp_ge_u32 s3, 14")
        a("s_cbranch_scc1 L_bc_now1")
        a("ds_read_b128 v[88:91], v30")
        a("L_bc_now1:")
        a("s_and_b32 %s, s3, 1" % S_A)
        a("s_lshl_b32 %s, %s, 4" % (S_A, S_A))
        a("s_lshr_b32 %s, %s, %s" % (S_B1, S_B1, S_A))
        a("s_lshl_b32 %s, %s, 16" % (S_B1, S_B1))
        a("v_and_b32 v5, 1, v4")
        a("v_lshrrev_b32 v6, 1, v4")
        a("v_lshl_add_u32 v5, v6, 2, v5")
        a("v_lshl_add_u32 v5, v32, 3, v5")
        a("v_lshlrev_b32 v5, 6, v5")
        a("s_lshl_b32 %s, s3, 2" % S_A)
        a("v_add_u32 v5, %s, v5" % S_A)
        a("s_waitcnt lgkmcnt(0)")
        for i in range(4):
            self.unpack(88 + i, 72 + 2 * i, 73 + 2 * i)
        for u in range(8):
            a("v_mul_f32 v%d, v100, v%d" % (72 + u, 72 + u))
        self.nop(1)
        for u in range(4):
            a("v_permlane32_swap_b32 v%d, v%d" % (72 + u, 76 + u))
        self.nop(1)
        for u in range(4):
            a("v_add_f32 v%d, v%d, v%d" % (72 + u, 72 + u, 76 + u))
        self.nop(1)
        a("v_permlane16_swap_b32 v72, v73")
        a("v_permlane16_swap_b32 v74, v75")
        self.nop(1)
        a("v_add_f32 v72, v72, v73")
        a("v_add_f32 v74, v74, v75")
        self.row_allreduce("v_add_f32", [72, 74], steps=(8, 4, 2))
        a("ds_write_b32 v5, v72 offset:%d" % L_H)
        a("ds_write_b32 v5, v74 offset:%d" % (L_H + 128))
        self.barrier()
        a("s_lshl_b32 %s, s3, 6" % S_A)
        a("v_lshlrev_b32 v5, 2, v3")
        a("v_add_u32 v5, %s, v5" % S_A)
        a("ds_read_b32 v72, v5 offset:%d" % L_H)
        a("s_mul_i32 %s, s3, 1792" % S_A)
        a("v_lshlrev_b32 v5, 5, v1")
        a("v_add_u32 v5, %s, v5" % S_A)
        for i in range(4):
            self.unpack(92 + i, 76 + 2 * i, 77 + 2 * i)
        a("s_waitcnt lgkmcnt(0)")
        self.row_allreduce("v_add_f32", [72])
        self.rb(72, 73)
        a("v_add_f32 v72, %s, v72" % S_B1)
        self.rb(72, 73)
        a("v_max_f32 v72, 0, v72")
        a("v_mul_f32 v72, v72, v72")
        self.rb(72, 73)
        for u in range(8):
            a("v_mul_f32 v%d, v72, v%d" % (76 + u, 76 + u))
        a("s_mov_b64 exec, %s" % S_EX)
        a("ds_write_b128 v5, v[76:79] offset:%d" % L_O2)
        a("ds_write_b128 v5, v[80:83] offset:%d" % (L_O2 + 16))
        a("s_mov_b64 exec, -1")
        self.barrier()
        a("s_cmp_eq_u32 s3, 15")
        a("s_cbranch_scc1 L_bc_fin")
        a("s_cmp_ge_u32 s3, 7")
        a("s_cbranch_scc1 L_bc_end")
        a("s_lshl_b32 %s, s3, 8" % S_A)
        a("v_lshlrev_b32 v5, 2, v1")
        a("v_add_u32 v5, %s, v5" % S_A)
        for k in range(16):
            a("ds_read_b32 v%d, v5 offset:%d" % (72 + k, L_O2 + k * 1792))
        a("s_mul_i32 %s, %s, 1792" % (S_A, S_RP))
        a("s_add_u32 %s, %s, 0x%x" % (S_A, S_A, WS_O))
        a("v_add_u32 v5, %s, v5" % S_A)
        a("v_and_b32 v6, 3, v1")
        a("v_lshlrev_b32 v6, 3, v6")
        a("v_lshrrev_b32 v6, v6, %s" % S_T)
        a("s_waitcnt lgkmcnt(0)")
        for st in (8, 4, 2, 1):
            for k in range(st):
                a("v_add_f32 v%d, v%d, v%d" % (72 + k, 72 + k, 72 + st + k))
        a("v_bfi_b32 v72, %s, v6, v72" % S_FF)
        a("global_store_dword v5, v72, %s sc1" % P_WS)
        self.stamp(11)
        a("s_branch L_bc_end")
        a("L_bc_fin:")
        a("s_lshl_b32 %s, %s, 3" % (S_A, S_RP))
        a("v_lshlrev_b32 v7, 1, v4")
        a("v_add_u32 v7, %s, v7" % S_A)
        a("global_load_ushort v60, v7, %s" % P_B2)
        a("global_load_ushort v61, v7, %s" % P_X)
        a("s_lshl_b32 %s, %s, 4" % (S_A, S_RP))
        a("v_mul_u32_u24 v5, 1792, v1")
        a("v_add_u32 v5, %s, v5" % S_A)
        for i in range(4):
            a("v_mov_b32 v%d, 0" % (12 + i))
        self.setex(0xffffffff, 0x0000ffff)
        a("v_add_u32 v40, 0x%x, v5" % WS_O)
        a("v_add_u32 v41, 0x%x, v5" % (WS_O + 64 * 1792))
        for k in range(2):
            a("v_add_u32 v%d, 0x%x, v5" % (42 + k, WS_S6 + k * 64 * 1792))

        def ldo():
            a("global_load_dwordx4 v[8:11], v40, %s sc1" % P_WS)
            a("s_mov_b64 exec, %s" % S_EX)
            a("global_load_dwordx4 v[12:15], v41, %s sc1" % P_WS)
            a("s_mov_b64 exec, -1")

        def cko():
            self.check_tags([8], 112, TB)
            a("s_mov_b64 exec, %s" % S_EX)
            for i in range(4):
                a("v_bitop3_b32 v112, v112, v%d, v%d bitop3:0xf6" % (12 + i, TB + i))
            a("s_mov_b64 exec, -1")
        self.poll(6, ldo, cko, 112, "tag")
        for i in range(4):
            a("v_add_f32 v%d, v%d, v%d" % (8 + i, 8 + i, 12 + i))
        self.swap_reduce4(8, 9, 10, 11)
        self.row_allreduce("v_add_f32", [8])
        self.rb(8, 9)
        a("v_lshlrev_b32 v60, 16, v60")
        a("v_lshlrev_b32 v61, 16, v61")
        a("v_add_f32 v8, v8, v60")
        self.rb(8, 9)
        a("v_mul_f32 v9, 0xbfb8aa3b, v8")
        a("v_exp_f32 v9, v9")
        self.nop(0)
        a("v_add_f32 v9, 1.0, v9")
        a("v_rcp_f32 v9, v9")
        self.nop(0)
        a("v_mul_f32 v62, v8, v9")
        self.rb(62, 9)
        self.setex(0x00010001, 0x00010001)
        self.stamp(11)

        def lds_():
            for k in range(2):
                a("global_load_dwordx4 %s, v%d, %s sc1" % (q(24 + 4 * k), 42 + k, P_WS))
        self.poll(7, lds_, lambda: self.check_tags([24, 28], 112, TB), 112, "tag")
        self.stamp(12)
        for i in range(4):
            a("v_add_f32 v%d, v%d, v%d" % (24 + i, 24 + i, 28 + i))
        self.swap_reduce4(24, 25, 26, 27)
        self.row_allreduce("v_add_f32", [24])
        self.rb(24, 9)
        a("v_mul_f32 v24, v24, v62")
        self.rb(24, 9)
        a("v_add_f32 v24, v61, v24")
        a("v_cvt_pk_bf16_f32 v24, v24, v24")
        a("s_mov_b64 exec, %s" % S_EX)
        a("global_store_short v7, v24, %s" % P_OUT)
        a("s_mov_b64 exec, -1")
        a("s_cmp_lg_u32 %s, 0" % S_RP)
        a("s_cbranch_scc1 L_bc_end")
        a("v_mov_b32 v5, 0")
        a("v_mov_b32 v6, %s" % S_T)
        a("s_mov_b64 exec, 1")
        a("global_store_dword v5, v6, %s sc1" % P_WS)
        a("s_mov_b64 exec, -1")
        a("L_bc_end:")
        self.stamp(13)
        self.dump_stamps(17)
        a("s_endpgm")


def make(path, **kw):
    k = K6(**kw)
    k.build()
    build_file(path, ["grid=(256,1,1) block=(1024,1,1) lds=%d" % LDS_BYTES], [(NAME + "_kernel", k.a, 128, 100, 128)])


if __name__ == "__main__":
    base = dict(rowpol="", colpol="", wopol="")
    make("k7.s", opts=dict(base, mlppos="e3got"))
    make("k7_a_st.s", stamps=True, opts=dict(base, mlppos="precols"))
    make("k7_b_st.s", stamps=True, opts=dict(base, mlppos="postcols"))
    make("k7_c_st.s", stamps=True, opts=dict(base, mlppos="e3got"))
    make("k7_d_st.s", stamps=True, opts=dict(base, mlppos="e3got", touch=0))
```
